```python
import torch

def _softmax(x, axis=-1):
    return torch.softmax(x, dim=axis)
def _gelu(x):
    return torch.nn.functional.gelu(x, approximate="tanh")
def _silu(x):
    return torch.nn.functional.silu(x)
def _sigmoid(x):
    return torch.sigmoid(x)
def _layernorm(x, axis=-1, eps=1e-5):
    m = x.mean(dim=axis, keepdim=True)
    v = x.var(dim=axis, keepdim=True, unbiased=False)
    return (x - m) / torch.sqrt(v + eps)
def _scatter_add(tgt, idx, src, axis=0):
    return tgt.clone().index_add_(axis, idx, src)
def _segment_sum(src, seg, n):
    out = torch.zeros((n,) + src.shape[1:], dtype=src.dtype)
    return out.index_add_(0, seg, src)
def _pad(x, pw):
    flat = tuple(v for pair in reversed(pw) for v in pair)
    return torch.nn.functional.pad(x, flat)

kernel_name = 'parallel_sum__linear_attn_block__mixer_channel_mlp__prompt'

def setup_inputs():

    _w = (lambda a: (lambda t: t.to(torch.bfloat16) if t.is_floating_point() else t)(torch.as_tensor(a)))
    def _A_setup():
        B, S, D = 1, 2048, 576
        return {
            "x": _w((lambda *s: torch.randn(*s, dtype=torch.bfloat16) * 0.05)(B, S, D)),
            "wqkv": _w((lambda *s: torch.randn(*s, dtype=torch.bfloat16) * 0.1)(D, 3 * D)),
            "wo": _w((lambda *s: torch.randn(*s, dtype=torch.bfloat16) * 0.05)(D, D)),
        }
    _A_in = _A_setup()

    def _B_setup():
        B, S, D, F = 1, 2048, 576, 4608
        return {
            "x": _w((lambda *s: torch.randn(*s, dtype=torch.bfloat16) * 0.05)(B, S, D)),
            "w1": _w((lambda *s: torch.randn(*s, dtype=torch.bfloat16) * 1.6)(D, F) * (D ** -0.5)),
            "b1": _w((lambda *s: torch.randn(*s, dtype=torch.bfloat16) * 0.8)(F)),
            "w2": _w((lambda *s: torch.randn(*s, dtype=torch.bfloat16) * 0.05)(F, D) * (F ** -0.5)),
            "b2": _w((lambda *s: torch.randn(*s, dtype=torch.bfloat16) * 0.05)(D)),
        }
    _B_in = _B_setup()

    return {
        "A_x": _A_in["x"],
        "A_wqkv": _A_in["wqkv"],
        "A_wo": _A_in["wo"],
        "B_x": _B_in["x"],
        "B_w1": _B_in["w1"],
        "B_b1": _B_in["b1"],
        "B_w2": _B_in["w2"],
        "B_b2": _B_in["b2"],
    }

def reference(A_x, A_wqkv, A_wo, B_x, B_w1, B_b1, B_w2, B_b2):
    def _A_ref(x, wqkv, wo):
        B, S, D = x.shape
        H = 32; Dh = D // H
        qkv = (lambda x, *d: x.permute(*d))((x @ wqkv).reshape(B, S, 3, H, Dh), 2, 0, 3, 1, 4)
        q, k, v = qkv[0], qkv[1], qkv[2]
        phi = lambda t: torch.where(t > 0, t + 1, torch.exp(t)) + 1e-6
        pq, pk = phi(q), phi(k)
        kv = torch.einsum("bhsd,bhse->bhde", pk, v)
        z = torch.einsum("bhsd->bhd", pk)
        num = torch.einsum("bhqd,bhde->bhqe", pq, kv)
        den = torch.einsum("bhqd,bhd->bhq", pq, z)[..., None] + 1e-6
        o = num / den
        return (lambda x, *d: x.permute(*d))(o, 0, 2, 1, 3).reshape(B, S, D) @ wo

    def _B_ref(x, w1, b1, w2, b2):
        y = _layernorm(x, axis=-1)
        h = _gelu(torch.einsum("bsd,df->bsf", y, w1) + b1)
        return torch.einsum("bsf,fd->bsd", h, w2) + b2

    x = A_x
    xn = _layernorm(x, axis=-1)
    return x + _A_ref(xn, A_wqkv, A_wo) + _B_ref(xn, B_w1, B_b1, B_w2, B_b2)
```

```python
import re, subprocess, os, tempfile

LLVM = 'bin'

class Inst:
    __slots__ = ('text', 'op', 'ops', 'label', 'size', 'rd', 'wr', 'kind', 'note', 'flex')
    def __init__(self, text, label=False, note=''):
        self.text = text; self.label = label; self.note = note
        self.size = None; self.flex = False
        if label:
            self.op = None; self.ops = []; self.rd = set(); self.wr = set(); self.kind = 'label'; self.size = 0
        else:
            parse_inst(self)

def split_ops(s):
    out = []; depth = 0; cur = ''
    for ch in s:
        if ch == '[': depth += 1
        if ch == ']': depth -= 1
        if ch == ',' and depth == 0:
            out.append(cur.strip()); cur = ''
        else:
            cur += ch
    if cur.strip(): out.append(cur.strip())
    return out

REG = re.compile(r'^(-|abs\(|\|)?([vsa])(\d+|\[(\d+):(\d+)\])\)?\|?$')
def regs_of(tok):
    tok = tok.strip()
    if tok in ('vcc',): return {('s', 106), ('s', 107)}
    if tok == 'vcc_lo': return {('s', 106)}
    if tok == 'vcc_hi': return {('s', 107)}
    if tok == 'exec': return {('s', 126), ('s', 127)}
    if tok == 'exec_lo': return {('s', 126)}
    if tok == 'exec_hi': return {('s', 127)}
    if tok == 'm0': return {('s', 124)}
    m = REG.match(tok)
    if not m: return set()
    f = m.group(2)
    if m.group(4) is not None:
        return {(f, r) for r in range(int(m.group(4)), int(m.group(5)) + 1)}
    return {(f, int(m.group(3)))}

TRANS = ('v_exp_f32', 'v_log_f32', 'v_rcp_f32', 'v_rsq_f32', 'v_sqrt_f32', 'v_sin_f32', 'v_cos_f32')
def base_op(op):
    for suf in ('_e32', '_e64', '_dpp', '_sdwa'):
        if op.endswith(suf): return op[:-len(suf)]
    return op

def parse_inst(I):
    t = I.text.strip()
    parts = t.split(None, 1)
    op = parts[0]; rest = parts[1] if len(parts) > 1 else ''
    I.op = op
    ops = split_ops(rest)
    mods = []
    if ops:
        last = ops[-1].split()
        if len(last) > 1 and not last[0].endswith(('(',)):
            ops[-1] = last[0]; mods = last[1:]
    I.ops = ops
    b = base_op(op)
    rd = set(); wr = set()
    R = [regs_of(o) for o in ops]
    if b.startswith('v_mfma'):
        I.kind = 'mfma'; wr |= R[0]; rd |= R[1] | R[2] | R[3]
    elif b.startswith('v_cmp'):
        I.kind = 'valu'; wr |= R[0]
        for r in R[1:]: rd |= r
        rd |= {('s', 126), ('s', 127)}
    elif b in ('v_readfirstlane_b32', 'v_readlane_b32'):
        I.kind = 'valu'; wr |= R[0]
        for r in R[1:]: rd |= r
    elif b.startswith('v_permlane') and 'swap' in b:
        I.kind = 'valu'; wr |= R[0] | R[1]; rd |= R[0] | R[1]
    elif b.startswith('v_'):
        I.kind = 'valu'
        wr |= R[0]
        start = 1
        if b in ('v_add_co_u32', 'v_sub_co_u32', 'v_addc_co_u32', 'v_subb_co_u32', 'v_mad_u64_u32'):
            wr |= R[1]; start = 2
        for r in R[start:]: rd |= r
        if b in ('v_fmac_f32', 'v_pk_fmac_f16', 'v_dot2c_f32_bf16', 'v_writelane_b32', 'v_mac_f32'): rd |= R[0]
        if b == 'v_cndmask_b32' and len(ops) == 3: rd |= {('s', 106), ('s', 107)}
        if op.endswith('_dpp') or op.endswith('_sdwa'): rd |= R[0]
    elif b.startswith('ds_'):
        I.kind = 'ds'
        if b.startswith('ds_read') or b.startswith('ds_bpermute') or b.startswith('ds_permute') or b.startswith('ds_swizzle'):
            wr |= R[0]
            for r in R[1:]: rd |= r
        else:
            for r in R: rd |= r
    elif b.startswith('buffer_'):
        I.kind = 'vmem'
        islds = 'lds' in mods
        if b.startswith('buffer_load'):
            if islds:
                for r in R: rd |= r
                rd |= {('s', 124)}
            else:
                wr |= R[0]
                for r in R[1:]: rd |= r
        elif b.startswith('buffer_wbl2') or b.startswith('buffer_inv'):
            pass
        else:
            for r in R: rd |= r
            if b.startswith('buffer_atomic') and 'sc0' in mods: wr |= R[0]
    elif b.startswith('global_'):
        I.kind = 'vmem'
        if b.startswith('global_load'):
            wr |= R[0]
            for r in R[1:]: rd |= r
        else:
            for r in R: rd |= r
    elif b.startswith('s_'):
        I.kind = 'salu'
        if b in ('s_waitcnt', 's_nop', 's_barrier', 's_endpgm', 's_sleep', 's_setprio', 's_branch') or b.startswith('s_cbranch'):
            if b == 's_cbranch_vccnz' or b == 's_cbranch_vccz': rd |= {('s', 106), ('s', 107)}
            if b.startswith('s_cbranch_exec'): rd |= {('s', 126), ('s', 127)}
        elif b.startswith('s_cmp') or b.startswith('s_bitcmp'):
            for r in R: rd |= r
        elif b.startswith('s_load') or b in ('s_memtime', 's_memrealtime', 's_getpc_b64', 's_getreg_b32'):
            I.kind = 'smem' if not b.startswith('s_get') else 'salu'
            wr |= R[0]
            for r in R[1:]: rd |= r
        elif 'saveexec' in b:
            wr |= R[0] | {('s', 126), ('s', 127)}
            for r in R[1:]: rd |= r
            rd |= {('s', 126), ('s', 127)}
        else:
            wr |= R[0]
            for r in R[1:]: rd |= r
            if b in ('s_addk_i32', 's_mulk_i32', 's_cmov_b32'): rd |= R[0]
    else:
        raise ValueError('unknown instruction: ' + t)
    I.rd = rd; I.wr = wr
    I.note = I.note
    return I

def mfma_passes(op):
    if '32x32x16' in op: return 8
    if '16x16x32' in op or '16x16x16' in op: return 4
    raise ValueError(op)

FLEX_OK = {'v_mul_f32', 'v_add_f32', 'v_sub_f32', 'v_subrev_f32', 'v_exp_f32', 'v_rcp_f32', 'v_rsq_f32', 'v_sqrt_f32', 'v_mov_b32', 'v_and_b32',
           'v_or_b32', 'v_xor_b32', 'v_lshlrev_b32', 'v_lshrrev_b32', 'v_max_f32', 'v_min_f32', 'v_add_u32', 'v_sub_u32',
           'v_min_u32', 'v_max_u32', 'v_mul_u32_u24', 'v_cvt_f32_u32'}

class Prog:
    def __init__(self):
        self.ins = []
        self.vm_issued = 0; self.vm_done = 0
        self.lg_issued = 0; self.lg_done = 0
        self.nlabel = 0
        self.max_vm_out = 0
    def i(self, text, note=''):
        I = Inst(text, note=note)
        self.ins.append(I)
        return I
    def label(self, name):
        self.ins.append(Inst(name, label=True))
    def newlabel(self, base='L'):
        self.nlabel += 1
        return f'{base}_{self.nlabel}'
    def comment(self, text):
        I = Inst('x', label=True); I.text = None; I.note = text; I.kind = 'comment'
        self.ins.append(I)
    def vm(self, text, note=''):
        self.i(text, note)
        self.vm_issued += 1
        out = self.vm_issued - self.vm_done
        self.max_vm_out = max(self.max_vm_out, out)
        assert out <= 63, f'vmcnt overflow at: {text}'
        return self.vm_issued
    def wait_vm(self, tag, extra=''):
        if tag is None or tag <= self.vm_done: return False
        n = self.vm_issued - tag
        assert 0 <= n <= 63
        self.i(f's_waitcnt vmcnt({n})')
        self.vm_done = tag
        return True
    def wait_vm_all(self):
        if self.vm_done < self.vm_issued:
            self.i('s_waitcnt vmcnt(0)')
        self.vm_done = self.vm_issued
    def ds(self, text, note=''):
        self.i(text, note)
        self.lg_issued += 1
        return self.lg_issued
    def wait_lg(self, tag):
        if tag is None or tag <= self.lg_done: return False
        n = self.lg_issued - tag
        n = min(n, 15)
        self.i(f's_waitcnt lgkmcnt({n})')
        self.lg_done = self.lg_issued - n
        return True
    def wait_lg_all(self):
        if self.lg_done < self.lg_issued:
            self.i('s_waitcnt lgkmcnt(0)')
        self.lg_done = self.lg_issued
    def smem_wait(self):
        self.i('s_waitcnt lgkmcnt(0)')
        self.lg_done = self.lg_issued
    def barrier(self, vm=None):
        if vm is not None: self.wait_vm(vm)
        self.wait_lg_all()
        self.i('s_barrier')
    def state(self):
        return (self.vm_issued, self.vm_done, self.lg_issued, self.lg_done)
    def set_state(self, st):
        self.vm_issued, self.vm_done, self.lg_issued, self.lg_done = st

    def preds(self):
        n = len(self.ins)
        labels = {I.text: k for k, I in enumerate(self.ins) if I.kind == 'label'}
        pred = [[] for _ in range(n)]
        for k, I in enumerate(self.ins):
            if k + 1 < n:
                if not (I.op in ('s_branch', 's_endpgm')):
                    pred[k + 1].append(k)
            if I.op and (I.op == 's_branch' or I.op.startswith('s_cbranch')):
                pred[labels[I.ops[0]]].append(k)
        return pred

    @staticmethod
    def need_states(P, C):
        need = 0
        pv = {r for r in P.wr if r[0] in 'va'}
        ps = {r for r in P.wr if r[0] == 's'}
        cb = base_op(C.op); pb = base_op(P.op)
        if P.kind == 'valu':
            if C.kind == 'mfma' and (pv & C.rd): need = max(need, 2)
            if pb in TRANS and C.kind == 'valu' and cb not in TRANS and (pv & C.rd): need = max(need, 1)
            if pb in TRANS and C.kind in ('valu',) and cb in TRANS and (pv & C.rd): need = max(need, 1)
            if cb in ('v_readfirstlane_b32', 'v_readlane_b32') and (pv & C.rd): need = max(need, 1)
            if cb.startswith('v_permlane') and (pv & C.rd): need = max(need, 2)
            if C.op.endswith('_dpp') and (pv & C.rd): need = max(need, 2)
            if pb.startswith('v_dot'):
                if cb == pb:
                    ab = regs_of(C.ops[1]) | regs_of(C.ops[2])
                    if pv & ab: need = max(need, 3)
                elif pv & (C.rd | C.wr): need = max(need, 3)
            if ps:
                if C.kind == 'vmem' and (ps & C.rd): need = max(need, 5)
                if C.kind == 'valu' and (ps & C.rd): need = max(need, 2)
                if cb in ('v_readlane_b32', 'v_writelane_b32') and (ps & C.rd): need = max(need, 4)
                if C.kind == 'salu' and (ps & C.rd): need = max(need, 1)
                if (ps & {('s', 126), ('s', 127)}) and C.kind == 'mfma': need = max(need, 4)
        if P.kind == 'mfma':
            p = mfma_passes(P.op)
            tab_valu = {2: 5, 4: 8, 8: 12, 16: 20}[p]
            tab_ab = tab_valu
            tab_c_ov = {2: 4, 4: 6, 8: 10, 16: 18}[p]
            tab_war = {2: 1, 4: 3, 8: 7, 16: 15}[p]
            if C.kind == 'mfma':
                ca = regs_of(C.ops[1]) | regs_of(C.ops[2]); cc = regs_of(C.ops[3])
                if P.wr & ca: need = max(need, tab_ab)
                if P.wr & cc:
                    if not (P.wr == cc and mfma_passes(C.op) == p): need = max(need, tab_c_ov)
                if (P.wr & C.wr) and not (P.wr & cc): need = max(need, tab_valu)
            elif C.kind == 'valu':
                if P.wr & (C.rd | C.wr): need = max(need, tab_valu)
                pc = regs_of(P.ops[3])
                if pc & C.wr: need = max(need, tab_war)
            elif C.kind in ('vmem', 'ds'):
                if P.wr & (C.rd | C.wr): need = max(need, tab_valu)
        if P.kind == 'vmem' and (pb.endswith('x4') or pb.endswith('x3')) and ('store' in pb):
            data = regs_of(P.ops[0]) if pb.startswith('buffer') else regs_of(P.ops[1])
            if data & C.wr:
                need = max(need, 2 if C.kind == 'valu' else 1)
        if P.kind == 'ds' and pb in ('ds_write_b128', 'ds_write_b96'):
            pass
        if P.kind == 'salu' and ('s', 124) in P.wr and C.kind == 'vmem' and ('s', 124) in C.rd:
            need = max(need, 1)
        return need

    def fix_hazards(self, verbose=False):
        MAXW = 20
        inserted = 0
        changed = True
        while changed:
            changed = False
            pred = self.preds()
            k = 0
            newins = []
            for k, C in enumerate(self.ins):
                if C.kind in ('label', 'comment'):
                    newins.append(C); continue
                worst = 0
                stack = [(p, 0) for p in pred[k]]
                seen = {}
                while stack:
                    p, d = stack.pop()
                    if d >= MAXW: continue
                    if seen.get(p, 99) <= d: continue
                    seen[p] = d
                    P = self.ins[p]
                    if P.kind in ('label', 'comment'):
                        for q in pred[p]: stack.append((q, d))
                        continue
                    nd = self.need_states(P, C)
                    if nd > d: worst = max(worst, nd - d)
                    w = 1
                    if P.op == 's_nop': w = int(P.ops[0]) + 1
                    for q in pred[p]: stack.append((q, d + w))
                if worst > 0:
                    if verbose: print(f'hazard: +{worst} before [{k}] {C.text}')
                    rem = worst
                    while rem > 0:
                        m = min(rem, 16)
                        newins.append(Inst(f's_nop {m-1}', note='hz'))
                        rem -= m
                    inserted += 1
                    changed = True
                    newins.append(C)
                    newins.extend(self.ins[k+1:])
                    break
                newins.append(C)
            self.ins = newins
        return inserted

    def fix_hazards_fast(self, verbose=False):
        MAXW = 20
        pred = self.preds()
        extra = [0]*len(self.ins)
        for k, C in enumerate(self.ins):
            if C.kind in ('label', 'comment'): continue
            worst = 0
            stack = [(p, extra[k]) for p in pred[k]]
            seen = {}
            while stack:
                p, d = stack.pop()
                if d >= MAXW: continue
                if seen.get(p, 99) <= d: continue
                seen[p] = d
                P = self.ins[p]
                if P.kind in ('label', 'comment'):
                    for q in pred[p]: stack.append((q, d))
                    continue
                nd = self.need_states(P, C)
                if nd > d: worst = max(worst, nd - d)
                w = 1
                if P.op == 's_nop': w = int(P.ops[0]) + 1
                ex = extra[p] if p < k else 0
                for q in pred[p]: stack.append((q, d + w + ex))
            if worst > 0:
                extra[k] += worst
                if verbose: print(f'hazard: +{worst} before {C.text}')
        out = []; cnt = 0
        for k, I in enumerate(self.ins):
            rem = extra[k]
            while rem > 0:
                m = min(rem, 16)
                out.append(Inst(f's_nop {m-1}', note='hz'))
                rem -= m; cnt += 1
            out.append(I)
        self.ins = out
        return cnt

    def compute_sizes(self):
        uniq = {}
        for I in self.ins:
            if I.kind in ('label', 'comment'): continue
            if I.op == 's_branch' or I.op.startswith('s_cbranch'):
                I.size = 4; continue
            uniq.setdefault(I.text, None)
        txt = '.amdgcn_target "amdgcn-amd-amdhsa--gfx950"\n.text\n' + '\n'.join(uniq.keys()) + '\n'
        r = subprocess.run([f'{LLVM}/llvm-mc', '-triple=amdgcn-amd-amdhsa', '-mcpu=gfx950', '-show-encoding'], input=txt, capture_output=True, text=True)
        if r.returncode != 0 or 'error' in r.stderr:
            print(r.stderr[:3000]); raise SystemExit('assembly error')
        encs = re.findall(r'encoding: \[([^\]]*)\]', r.stdout)
        assert len(encs) == len(uniq), (len(encs), len(uniq))
        for key, enc in zip(list(uniq.keys()), encs):
            uniq[key] = len(enc.split(','))
        for I in self.ins:
            if I.kind in ('label', 'comment'): continue
            if I.size is None or not (I.op == 's_branch' or I.op.startswith('s_cbranch')):
                I.size = uniq[I.text]

    def align8(self, verbose=False):
        self.compute_sizes()
        out = []; off = 0; nprom = 0; nnop = 0
        for I in self.ins:
            if I.kind in ('label', 'comment'):
                out.append(I); continue
            if I.size >= 8 and off % 8 == 4:
                fixed = False
                for q in range(len(out) - 1, -1, -1):
                    J = out[q]
                    if J.kind in ('comment',): continue
                    if J.kind == 'label': break
                    if J.size == 4:
                        b = base_op(J.op)
                        if J.kind == 'valu' and b in FLEX_OK and not J.op.endswith('_e64') and not any(re.match(r'^(0x[0-9a-f]+|\d{3,}|-?\d+\.\d+e?.*)$', o) and not inline_ok(o) for o in J.ops[1:]):
                            J.text = J.text.replace(J.op, b + '_e64', 1); J.op = b + '_e64'; J.size = 8
                            fixed = True; nprom += 1
                        break
                    if J.size >= 8: break
                if fixed:
                    off += 4
                else:
                    out.append(Inst('s_nop 0', note='al')); out[-1].size = 4; off += 4; nnop += 1
            out.append(I); off += I.size
        self.ins = out
        return nprom, nnop, off

    def text(self):
        L = []
        for I in self.ins:
            if I.kind == 'comment': L.append(f'; {I.note}')
            elif I.kind == 'label': L.append(f'{I.text}:')
            else: L.append('  ' + I.text + (f'   ; {I.note}' if I.note else ''))
        return '\n'.join(L) + '\n'

def inline_ok(o):
    try:
        if o in ('0.5', '-0.5', '1.0', '-1.0', '2.0', '-2.0', '4.0', '-4.0'): return True
        v = int(o, 0)
        return -16 <= v <= 64
    except Exception:
        return False
```

```python
import sys, json
from asmlib import *

KNAME = 'parallel_sum__linear_attn_block__mixer_channel_mlp__prompt_kernel'

NQ, NG1, NG2 = 72, 162, 189
NU = NQ + NG1 + NG2
U_G1 = NQ; U_G2 = NQ + NG1
WS_STREAM = 0
WS_PX = 0x1000000
WS_PS = 0x2000000
WS_F0 = 0x2200000; WS_F2 = 0x2201000; WS_FA = 0x2202000; WS_NONCE = 0x2208000
WS_XF = 0x2300000
WS_KVG = 0x2400000
WS_DBG = 0x2800000
WS_DBG2 = 0x4000000
WS_SIZE = 0x2500000
L_HF = 0
L_OF = 73728
L_Y = 86016
L_KVF = L_Y
L_PQ = L_Y + 18432
PQ_RS = 208
L_KVL = L_Y + 32768
L_BD = L_Y + 40960
L_ZD = L_BD + 15360
BD_RS = 192
L_TB1 = 159744
L_TS = L_TB1 + 2304
L_DUMMY = L_TS + 256
LDS_SIZE = 163840

S_W, S_J, S_I, S_NONCE = 26, 27, 28, 29
SRD_WS, SRD_SRC, SRD_X, SRD_OUT, SRD_B = 32, 36, 40, 44, 48
S_T = 52
S_STR = 80
S_C0, S_C1, S_LOG2E, S_ONES = 81, 82, 83, 84
V_L16 = 1
V_N, V_G = 2, 3
ACC = [32, 48]
RING = 64; R = 20
VB = 176

def s(n, c=1): return f's{n}' if c == 1 else f's[{n}:{n+c-1}]'
def v(n, c=1): return f'v{n}' if c == 1 else f'v[{n}:{n+c-1}]'
def a(n, c=1): return f'a{n}' if c == 1 else f'a[{n}:{n+c-1}]'

def breg(f, nv_first=None):
    if f < 64: return a(4*f, 4)
    return v(VB + 4*(f-64), 4)
def yreg(sidx, tg):
    f = sidx*4 + tg
    if f < 64: return a(4*f, 4)
    return v(224 + 4*(f-64), 4)

class Gen:
    def __init__(self, cfg):
        self.cfg = cfg
        self.p = Prog()
        self.stop = cfg.get('stop', None)
        self.ws_size = 0x8000000 if cfg.get('debug') else WS_SIZE

    def srd(self, dst, lo, hi, size):
        p = self.p
        p.i(f's_mov_b32 {s(dst)}, {s(lo)}')
        p.i(f's_mov_b32 {s(dst+1)}, {s(hi)}')
        p.i(f's_mov_b32 {s(dst+2)}, {size}')
        p.i(f's_mov_b32 {s(dst+3)}, 0x20000')

    def poll_board(self, off, nslots_dw2=True, name='poll'):
        p = self.p
        L = p.newlabel(name)
        p.i(f's_lshl_b32 {s(S_T)}, {s(S_J)}, 9')
        p.i(f's_add_u32 {s(S_T)}, {s(S_T)}, {off}')
        p.i(f'v_lshrrev_b32 v170, 1, {v(V_L16)}')
        p.label(L)
        p.vm(f'buffer_load_dwordx2 v[168:169], v170, {s(SRD_WS,4)}, {s(S_T)} offen sc1')
        p.wait_vm_all()
        p.i(f'v_cmp_ne_u32 vcc, {s(S_NONCE)}, v168')
        p.i(f'v_cmp_ne_u32 {s(S_T+2,2)}, {s(S_NONCE)}, v169')
        p.i('s_nop 1')
        p.i(f's_or_b64 vcc, vcc, {s(S_T+2,2)}')
        p.i('s_cmp_eq_u64 vcc, 0')
        p.i(f's_cbranch_scc0 {L}')

    def set_flag(self, soff_sreg, data_v=172):
        p = self.p
        p.i(f'v_mov_b32 v{data_v}, {s(S_NONCE)}')
        p.i(f'v_mov_b32 v{data_v+1}, 0')
        p.i('s_mov_b64 exec, 1')
        t = p.vm(f'buffer_store_dword v{data_v}, v{data_v+1}, {s(SRD_WS,4)}, {s(soff_sreg)} offen sc1')
        p.i('s_mov_b64 exec, -1')
        return t

    def dump_regs(self, regs, slot):
        p = self.p
        p.i(f's_lshl_b32 {s(S_T)}, s2, 2')
        p.i(f's_add_u32 {s(S_T)}, {s(S_T)}, {s(S_W)}')
        p.i(f's_lshl_b32 {s(S_T)}, {s(S_T)}, 14')
        p.i(f's_add_u32 {s(S_T)}, {s(S_T)}, {WS_DBG}')
        p.i(f'v_lshrrev_b32 v31, 2, {v(V_L16)}')
        for k, r in enumerate(regs):
            idx = slot + k
            assert idx < 64
            if r.startswith('a'):
                p.i(f'v_accvgpr_read_b32 v30, {r}')
                r = 'v30'
            p.i(f's_add_u32 {s(S_T+1)}, {s(S_T)}, {idx*256}')
            p.vm(f'buffer_store_dword {r}, v31, {s(SRD_WS,4)}, {s(S_T+1)} offen')
            p.wait_vm_all()

    def dump_lds(self, lds_off, nbytes):
        p = self.p
        p.barrier()
        p.i(f's_lshl_b32 {s(S_T)}, s2, 17')
        p.i(f's_add_u32 {s(S_T)}, {s(S_T)}, {WS_DBG2}')
        p.i(f'v_lshlrev_b32 v31, 4, v0')
        p.i(f'v_add_u32 v30, {lds_off}, v31')
        for k in range(0, nbytes, 4096):
            t = p.ds(f'ds_read_b128 v[24:27], v30')
            p.wait_lg(t)
            p.vm(f'buffer_store_dwordx4 v[24:27], v31, {s(SRD_WS,4)}, {s(S_T)} offen')
            p.wait_vm_all()
            p.i(f'v_add_u32 v30, 4096, v30')
            p.i(f's_add_u32 {s(S_T)}, {s(S_T)}, 4096')

    def end(self):
        p = self.p
        p.label('L_end')
        p.i('s_endpgm')

    def unit_params(self, t):
        p = self.p
        U = 58
        p.i(f's_lshl_b32 {s(U)}, {s(S_W)}, 5')
        p.i(f's_add_u32 {s(U)}, {s(U)}, {s(S_I)}')
        if t: p.i(f's_add_u32 {s(U)}, {s(U)}, {128*t}')
        p.i(f's_mul_i32 s70, {s(S_J)}, {4*NU}')
        p.i(f's_add_u32 s70, s70, {s(U)}')
        p.i(f's_lshl_b32 s70, s70, 10')
        p.i('s_mov_b32 s66, 8'); p.i('s_mov_b32 s67, 0'); p.i('s_mov_b32 s68, 32'); p.i('s_mov_b32 s69, 64')
        Ldone = p.newlabel('Lu')
        def typeQ():
            p.i(f's_mul_i32 s59, {s(U)}, 3641'); p.i('s_lshr_b32 s59, s59, 16')
            p.i('s_mul_i32 s60, s59, 18'); p.i(f's_sub_u32 s60, {s(U)}, s60'); p.i('s_lshl_b32 s60, s60, 5')
            p.i('s_mov_b32 s61, 4'); p.i('s_mov_b32 s62, 8'); p.i('s_mov_b32 s63, 3456'); p.i('s_mov_b32 s64, 575')
            self.srd(SRD_SRC, 6, 7, 576*3456)
            p.i(f's_mul_i32 s71, {s(S_J)}, 144')
            L1, L2, L3 = p.newlabel('Lq'), p.newlabel('Lq'), p.newlabel('Lq')
            p.i('s_cmp_eq_u32 s59, 0'); p.i(f's_cbranch_scc0 {L1}')
            p.i('s_add_u32 s65, s71, 1152'); p.i(f's_branch {Ldone}')
            p.label(L1)
            p.i('s_cmp_eq_u32 s59, 1'); p.i(f's_cbranch_scc0 {L2}')
            p.i('s_add_u32 s65, s71, 1280'); p.i('s_mov_b32 s66, 1'); p.i(f's_mov_b32 s67, {1152-128-16}')
            p.i(f's_branch {Ldone}')
            p.label(L2)
            p.i('s_cmp_eq_u32 s59, 2'); p.i(f's_cbranch_scc0 {L3}')
            p.i(f's_add_u32 s65, s71, {2304+112}'); p.i('s_mov_b32 s66, 2'); p.i(f's_mov_b32 s67, {(-(2304+112) - 32) & 0xffffffff}')
            p.i(f's_branch {Ldone}')
            p.label(L3)
            p.i('s_add_u32 s65, s71, 96'); p.i('s_mov_b32 s68, 0'); p.i('s_mov_b32 s69, 32')
            p.i(f's_branch {Ldone}')
        def type1():
            p.i(f's_sub_u32 s59, {s(U)}, {U_G1}')
            p.i('s_mul_i32 s71, s59, 3641'); p.i('s_lshr_b32 s71, s71, 16')
            p.i('s_mul_i32 s60, s71, 18'); p.i('s_sub_u32 s60, s59, s60'); p.i('s_lshl_b32 s60, s60, 5')
            p.i('s_mov_b32 s61, 4'); p.i('s_mov_b32 s62, 8'); p.i('s_mov_b32 s63, 9216'); p.i('s_mov_b32 s64, 575')
            self.srd(SRD_SRC, 12, 13, 576*9216)
            p.i(f's_mul_i32 s65, {s(S_J)}, 1152'); p.i('s_lshl_b32 s71, s71, 7'); p.i('s_add_u32 s65, s65, s71')
            p.i(f's_branch {Ldone}')
        def type2():
            p.i(f's_sub_u32 s59, {s(U)}, {U_G2}')
            p.i('s_mul_i32 s71, s59, 3121'); p.i('s_lshr_b32 s71, s71, 16')
            p.i('s_mul_i32 s72, s71, 21'); p.i('s_sub_u32 s72, s59, s72')
            p.i(f's_add_u32 s73, {s(S_J)}, s71'); p.i('s_and_b32 s73, s73, 7')
            p.i('s_cmp_eq_u32 s71, 0'); p.i('s_cselect_b32 s73, 8, s73')
            p.i('s_lshl_b32 s65, s73, 7')
            p.i('s_mov_b32 s62, 4'); p.i('s_mov_b32 s63, 1152')
            La, Lb = p.newlabel('Lw'), p.newlabel('Lw')
            p.i('s_cmp_lt_u32 s72, 18'); p.i(f's_cbranch_scc0 {Lb}')
            self.srd(SRD_SRC, 16, 17, 4608*1152)
            p.i('s_mov_b32 s64, 4607')
            p.i(f's_mul_i32 s60, {s(S_J)}, 576')
            p.i('s_cmp_lt_u32 s72, 16'); p.i(f's_cbranch_scc0 {La}')
            p.i('s_lshr_b32 s73, s72, 2'); p.i('s_lshl_b32 s73, s73, 7'); p.i('s_add_u32 s60, s60, s73')
            p.i('s_and_b32 s73, s72, 3'); p.i('s_lshl_b32 s73, s73, 4'); p.i('s_add_u32 s60, s60, s73')
            p.i('s_mov_b32 s61, 64'); p.i(f's_branch {Ldone}')
            p.label(La)
            p.i('s_sub_u32 s73, s72, 16'); p.i('s_lshl_b32 s73, s73, 5'); p.i('s_add_u32 s60, s60, s73'); p.i('s_add_u32 s60, s60, 512')
            p.i('s_mov_b32 s61, 16'); p.i(f's_branch {Ldone}')
            p.label(Lb)
            self.srd(SRD_SRC, 8, 9, 576*1152)
            p.i(f's_mul_i32 s60, {s(S_J)}, 72'); p.i('s_add_u32 s64, s60, 71')
            p.i('s_sub_u32 s73, s72, 18'); p.i('s_lshl_b32 s73, s73, 5'); p.i('s_add_u32 s60, s60, s73')
            p.i('s_mov_b32 s61, 16'); p.i(f's_branch {Ldone}')
        if t == 0:
            L = p.newlabel('Lt')
            p.i(f's_cmp_lt_u32 {s(U)}, {U_G1}'); p.i(f's_cbranch_scc0 {L}')
            typeQ(); p.label(L); type1()
        elif t == 1:
            L = p.newlabel('Lt')
            p.i(f's_cmp_lt_u32 {s(U)}, {U_G2}'); p.i(f's_cbranch_scc0 {L}')
            type1(); p.label(L); type2()
        elif t == 2:
            type2()
        else:
            L = p.newlabel('Lt')
            p.i(f's_cmp_lt_u32 {s(U)}, {NU}'); p.i(f's_cbranch_scc0 {L}')
            type2(); p.label(L)
            for r_ in (60, 61, 62, 63, 64, 65): p.i(f's_mov_b32 s{r_}, 0')
            self.srd(SRD_SRC, 16, 17, 0)
            p.i('s_mov_b32 s70, 0x70000000')
        p.label(Ldone)

    def unit_dma(self, t):
        p = self.p
        p.i('v_mad_u32_u24 v10, v4, s61, v5')
        p.i('v_mad_u32_u24 v11, v7, s68, v6')
        p.i('v_mad_u32_u24 v11, v8, s69, v11')
        p.i('v_mov_b32 v12, s67')
        p.i('v_cmp_le_u32 vcc, s66, v9')
        p.i('v_cndmask_b32 v12, 0, v12, vcc')
        p.i('v_add3_u32 v11, v11, v12, s65')
        p.i(f's_lshl_b32 s72, {s(S_W)}, 14')
        p.i(f's_add_u32 s72, s72, {L_Y + t*4096}')
        tag = None
        p.i('s_mov_b32 s73, s60')
        for d in range(4):
            p.i('v_add_u32 v12, s73, v10')
            p.i('v_min_u32 v12, s64, v12')
            p.i(f'v_mad_u32_u24 v{13+d}, v12, s63, v11')
            if d < 3: p.i('s_add_u32 s73, s73, s62')
        for d in range(4):
            p.i('s_mov_b32 m0, s72')
            p.i('s_add_u32 s72, s72, 1024')
            tag = p.vm(f'buffer_load_dwordx4 v{13+d}, {s(SRD_SRC,4)}, 0 offen lds')
        return tag

    def unit_store(self, t, tag, soff_s):
        p = self.p
        p.wait_vm(tag)
        tags = []
        for c in range(4):
            p.ds(f'ds_read_b64_tr_b16 v[{144+4*c}:{145+4*c}], v17 offset:{t*4096 + 32*c}')
            tags.append(p.ds(f'ds_read_b64_tr_b16 v[{146+4*c}:{147+4*c}], v17 offset:{t*4096 + 32*c + 512}'))
        last = None
        for c in range(4):
            p.wait_lg(tags[c])
            if c: p.i(f's_add_u32 {s(soff_s)}, {s(soff_s)}, {NU*1024}')
            last = p.vm(f'buffer_store_dwordx4 v[{144+4*c}:{147+4*c}], {v(V_L16)}, {s(SRD_WS,4)}, {s(soff_s)} offen sc1')
        return last

    def prologue(self):
        p = self.p
        p.i('s_cmp_ge_u32 s2, 256')
        p.i('s_cbranch_scc1 L_end')
        p.i('s_load_dwordx16 s[4:19], s[0:1], 0')
        p.i('s_load_dwordx4 s[20:23], s[0:1], 64')
        p.i('s_load_dwordx2 s[24:25], s[0:1], 80')
        self.code_warm_pos = len(p.ins)
        p.i(f's_getpc_b64 {s(54,2)}')
        p.i('v_lshlrev_b32 v20, 7, v0')
        p.i('v_min_u32 v21, CODE_LAST, v20'.replace('CODE_LAST', '0x7ffffff0'), note='CODEWARM0')
        p.vm(f'global_load_dword v22, v21, {s(54,2)}')
        p.i('v_add_u32 v20, 0x8000, v20')
        p.i('v_min_u32 v21, CODE_LAST, v20'.replace('CODE_LAST', '0x7ffffff0'), note='CODEWARM1')
        p.vm(f'global_load_dword v23, v21, {s(54,2)}')
        p.i('v_lshrrev_b32 v4, 6, v0')
        p.i('v_and_b32 v5, 63, v0')
        p.i(f'v_readfirstlane_b32 {s(S_W)}, v4')
        p.i(f'v_lshlrev_b32 {v(V_L16)}, 4, v5')
        p.i(f'v_and_b32 {v(V_N)}, 15, v5')
        p.i(f'v_lshrrev_b32 {v(V_G)}, 4, v5')
        p.i('v_and_b32 v9, 7, v5')
        p.i('v_lshrrev_b32 v10, 3, v5')
        p.i('v_lshrrev_b32 v4, 2, v10')
        p.i('v_and_b32 v18, 3, v10')
        p.i('v_and_b32 v6, 1, v9'); p.i('v_lshlrev_b32 v6, 4, v6')
        p.i('v_bfe_u32 v7, v9, 1, 1')
        p.i('v_lshrrev_b32 v8, 2, v9')
        p.i('v_mov_b32 v5, v18')
        p.i(f's_and_b32 {s(S_J)}, s2, 7')
        p.i(f's_lshr_b32 {s(S_I)}, s2, 3')
        p.i(f'v_lshrrev_b32 v17, 2, {v(V_N)}')
        p.i(f'v_lshl_add_u32 v17, {v(V_G)}, 3, v17')
        p.i('v_lshlrev_b32 v17, 7, v17')
        p.i(f'v_and_b32 v18, 3, {v(V_N)}')
        p.i('v_lshl_add_u32 v17, v18, 3, v17')
        p.i(f's_lshl_b32 s72, {s(S_W)}, 14')
        p.i(f's_add_u32 s72, s72, {L_Y}')
        p.i('v_add_u32 v17, s72, v17')
        p.smem_wait()
        self.srd(SRD_WS, 24, 25, self.ws_size)
        self.srd(SRD_X, 4, 5, 2048*1152)
        p.i(f's_add_u32 s56, s24, {WS_NONCE}')
        p.i('s_addc_u32 s57, s25, 0')
        p.i(f's_load_dword {s(S_NONCE)}, s[56:57], 0')
        self.unit_params(0)
        p.i('s_mov_b32 s74, s70')
        tagU = [self.unit_dma(0)]
        p.i(f's_lshl_b32 s56, {s(S_J)}, 13')
        p.i(f's_mul_i32 s57, {s(S_I)}, 180')
        p.i('s_add_u32 s56, s56, s57')
        p.i(f's_add_u32 s56, s56, {WS_KVG}')
        p.i(f's_cmp_eq_u32 {s(S_W)}, 0')
        p.i('s_cselect_b32 s56, s56, 0x70000000')
        p.i(f'v_lshrrev_b32 v18, 2, {v(V_L16)}')
        p.i('v_mov_b32 v19, 0x70000000')
        p.i('v_cmp_gt_u32 vcc, 180, v18')
        p.i('v_cndmask_b32 v18, v19, v18, vcc')
        p.i('v_mov_b32 v19, 0')
        p.vm(f'buffer_store_dword v19, v18, {s(SRD_WS,4)}, s56 offen sc1')
        p.i(f's_lshl_b32 s56, {s(S_I)}, 6')
        p.i(f's_lshl_b32 s57, {s(S_W)}, 4')
        p.i('s_add_u32 s56, s56, s57')
        p.i(f'v_add_u32 v18, s56, {v(V_N)}')
        p.i('v_mul_u32_u24 v18, 1152, v18')
        p.i(f'v_lshl_add_u32 v18, {v(V_G)}, 4, v18')
        xt = None
        for k in range(18):
            xt = p.vm(f'buffer_load_dwordx4 v[{64+4*k}:{67+4*k}], v18, {s(SRD_X,4)}, 0 offen offset:{64*k}')
        p.i(f's_mul_i32 s56, {s(S_J)}, 1152')
        p.i('s_add_u32 s48, s14, s56'); p.i('s_addc_u32 s49, s15, 0'); p.i('s_mov_b32 s50, 1152'); p.i('s_mov_b32 s51, 0x20000')
        p.i('v_lshlrev_b32 v19, 2, v0')
        p.vm(f'buffer_load_dword v24, v19, {s(SRD_B,4)}, 0 offen')
        tb1 = p.vm(f'buffer_load_dword v25, v19, {s(SRD_B,4)}, 0 offen offset:1024')
        soffs = [74]
        for t in (1, 2, 3):
            self.unit_params(t)
            p.i(f's_mov_b32 s{74+t}, s70')
            tagU.append(self.unit_dma(t))
            soffs.append(74+t)
        p.smem_wait()
        p.i(f's_mul_i32 {s(S_NONCE)}, {s(S_NONCE)}, 1664525')
        p.i(f's_add_u32 {s(S_NONCE)}, {s(S_NONCE)}, 1013904223')
        st0 = self.unit_store(0, tagU[0], 74)
        p.wait_vm(xt)
        p.i(f's_mov_b32 {s(S_ONES)}, 0x3f803f80')
        for k in range(4):
            p.i(f'v_mov_b32 v{136+k}, 0'); p.i(f'v_mov_b32 v{140+k}, 0')
        for k in range(72):
            p.i(f'v_dot2_f32_bf16 v{136+k%4}, v{64+k}, {s(S_ONES)}, v{136+k%4}')
            p.i(f'v_dot2_f32_bf16 v{140+k%4}, v{64+k}, v{64+k}, v{140+k%4}')
        p.i('v_add_f32 v136, v136, v137'); p.i('v_add_f32 v138, v138, v139'); p.i('v_add_f32 v140, v140, v141'); p.i('v_add_f32 v142, v142, v143')
        p.i('v_add_f32 v136, v136, v138'); p.i('v_add_f32 v140, v140, v142')
        for reg in (136, 140):
            p.i(f'v_mov_b32 v137, v{reg}')
            p.i(f'v_permlane16_swap_b32 v{reg}, v137')
            p.i(f'v_add_f32 v{reg}, v{reg}, v137')
            p.i(f'v_mov_b32 v137, v{reg}')
            p.i(f'v_permlane32_swap_b32 v{reg}, v137')
            p.i(f'v_add_f32 v{reg}, v{reg}, v137')
        inv = 1.0/576.0
        import struct
        f2h = lambda x: hex(struct.unpack('<I', struct.pack('<f', x))[0])
        p.i(f'v_mul_f32 v136, {f2h(inv)}, v136')
        p.i(f'v_mul_f32 v140, {f2h(inv)}, v140')
        p.i('v_fma_f32 v140, -v136, v136, v140')
        p.i('v_max_f32 v140, 0, v140')
        p.i(f'v_add_f32 v141, {f2h(1e-5)}, v140')
        p.i('v_rsq_f32 v141, v141')
        p.i('v_mul_f32 v142, v141, v141')
        p.i('v_mul_f32 v142, v142, v140')
        p.i(f'v_add_f32 v142, {f2h(1e-5)}, v142')
        p.i('v_rsq_f32 v143, v142')
        p.i('v_mul_f32 v137, v142, v143')
        p.i('v_mul_f32 v138, v141, v143')
        p.i('v_mov_b32 v139, v138')
        p.i('v_mul_f32 v140, -v136, v138')
        p.i('v_mov_b32 v141, v140')
        p.i('s_mov_b32 s56, 0xffff0000')
        for k in range(72):
            t0 = 160 + 2*(k % 4)
            p.i(f'v_lshlrev_b32 v{t0}, 16, v{64+k}')
            p.i(f'v_and_b32 v{t0+1}, s56, v{64+k}')
            p.i(f'v_pk_fma_f32 v[{t0}:{t0+1}], v[{t0}:{t0+1}], v[138:139], v[140:141]')
            p.i(f'v_cvt_pk_bf16_f32 v{64+k}, v{t0}, v{t0+1}')
        p.wait_vm(st0)
        p.i(f's_lshl_b32 s56, {s(S_I)}, 2'); p.i(f's_add_u32 s56, s56, {s(S_W)}'); p.i('s_lshl_b32 s56, s56, 2')
        p.i(f's_lshl_b32 s57, {s(S_J)}, 9'); p.i('s_add_u32 s56, s56, s57')
        p.i(f's_add_u32 s78, s56, {WS_F2}')
        p.i(f's_add_u32 s56, s56, {WS_F0}')
        self.set_flag(56)
        stl = None
        for t in (1, 2, 3):
            stl = self.unit_store(t, tagU[t], 74+t)
        self.st_last_unit = stl
        p.i('s_mov_b32 s56, 0xffff0000')
        p.i('v_lshlrev_b32 v26, 16, v24'); p.i('v_and_b32 v27, s56, v24')
        p.i('v_lshlrev_b32 v28, 16, v25'); p.i('v_and_b32 v29, s56, v25')
        p.i('v_lshlrev_b32 v19, 3, v0')
        p.i(f'v_add_u32 v20, {L_TB1}, v19')
        p.ds('ds_write_b64 v20, v[26:27]')
        p.i(f'v_add_u32 v20, {L_TB1+2048}, v19')
        p.i(f'v_mov_b32 v21, {L_DUMMY}')
        p.i('v_cmp_gt_u32 vcc, 32, v0')
        p.i('v_cndmask_b32 v20, v21, v20, vcc')
        p.ds('ds_write_b64 v20, v[28:29]')
        p.i(f's_lshl_b32 s56, {s(S_W)}, 6')
        p.i(f's_add_u32 s56, s56, {L_TS}')
        p.i(f'v_lshlrev_b32 v20, 2, {v(V_N)}')
        p.i('v_add_u32 v20, s56, v20')
        p.ds('ds_write_b32 v20, v137')
        p.barrier()
        p.i(f's_lshl_b32 s56, {s(S_W)}, 10')
        p.i(f's_add_u32 s56, s56, {L_Y}')
        p.i(f'v_add_u32 v20, s56, {v(V_L16)}')
        p.i('v_add_u32 v21, 0x10000, v20')
        for k in range(18):
            if k < 16: p.ds(f'ds_write_b128 v20, v[{64+4*k}:{67+4*k}] offset:{k*4096}')
            else: p.ds(f'ds_write_b128 v21, v[{64+4*k}:{67+4*k}] offset:{(k-16)*4096}')
        p.barrier()
        p.i(f'v_add_u32 v20, {L_Y}, {v(V_L16)}')
        p.i('v_add_u32 v21, 0x10000, v20')
        for k in range(18):
            for tg in range(4):
                off = (k*4+tg)*1024
                if off < 65536: p.ds(f'ds_read_b128 {yreg(k,tg)}, v20 offset:{off}')
                else: p.ds(f'ds_read_b128 {yreg(k,tg)}, v21 offset:{off-65536}')
                if (k*4+tg) % 12 == 11: p.wait_lg(p.lg_issued - 4)
        p.barrier()
        del inv

    def ring_init(self):
        p = self.p
        self.rtag = {}; self.rnext = 0
        p.i(f's_lshl_b32 {s(S_STR)}, {s(S_J)}, 2'); p.i(f's_add_u32 {s(S_STR)}, {s(S_STR)}, {s(S_W)}')
        p.i(f's_mul_i32 {s(S_STR)}, {s(S_STR)}, {NU*1024}')
    def slot(self, u): return RING + 4*(u % R)
    def ring_load(self):
        p = self.p; u = self.rnext
        if u >= NU: return
        if u == 128: assert self.f2_checked
        if u % 4 == 0 and u > 0: p.i(f's_add_u32 {s(S_STR)}, {s(S_STR)}, 4096')
        sl = self.slot(u)
        self.rtag[u] = p.vm(f'buffer_load_dwordx4 {v(sl,4)}, {v(V_L16)}, {s(SRD_WS,4)}, {s(S_STR)} offen offset:{(u%4)*1024} sc1')
        self.rnext += 1

    def run_pass(self, u0, nk, mf, fillers=(), start=2, tail=0):
        p = self.p
        rows = [mf(k) for k in range(nk)]
        n = sum(len(r) for r in rows)
        total = sum(c for c, _ in fillers)
        fi = 0; acc = 0.0; m = 0
        span = max(1, n - tail - start)
        for k in range(nk):
            p.wait_vm(self.rtag[u0+k])
            for q, txt in enumerate(rows[k]):
                p.i(txt); m += 1
                if q == len(rows[k]) - 1:
                    self.ring_load()
                if m > start:
                    tgt = total * min(1.0, (m - start) / span)
                    while fi < len(fillers) and acc + fillers[fi][0]*0.5 <= tgt:
                        fillers[fi][1](); acc += fillers[fi][0]; fi += 1
        while fi < len(fillers):
            fillers[fi][1](); fi += 1

    def phi_consts(self, kind):
        p = self.p
        import struct
        f2h = lambda x: hex(struct.unpack('<I', struct.pack('<f', x))[0])
        p.i(f's_lshl_b32 s57, s56, 4')
        p.i(f'v_add_u32 v27, s57, {v(V_N)}')
        p.i('v_cmp_gt_u32 vcc, 72, v27')
        p.i(f'v_mov_b32 v28, {f2h(1e-6)}')
        p.i('v_cndmask_b32 v28, 0, v28, vcc')
        p.i(f'v_mov_b32 v29, 0xff7fffff')
        p.i(f'v_mov_b32 v27, {f2h(1e-6)}')
        p.i('v_cndmask_b32 v29, v29, v27, vcc')
        p.i('v_cndmask_b32 v30, 0, 1.0, vcc')

    def phi_ops(self, acc, tgs):
        p = self.p
        for tg in tgs:
            regs = [acc + 4*self.accidx(tg, tgs) + i for i in range(4)]
            for i in range(4): p.i(f'v_fma_f32 v{regs[i]}, v{regs[i]}, v{144+4*tg+i}, v28')
            for i in range(4): p.i(f'v_mul_f32 v{160+i}, {s(S_LOG2E)}, v{regs[i]}')
            for i in range(4): p.i(f'v_exp_f32 v{160+i}, v{160+i}')
            for i in range(4): p.i(f'v_max_f32 v{regs[i]}, v{regs[i]}, v29')
            for i in range(4): p.i(f'v_min_f32 v{160+i}, v{160+i}, v30')
            for i in range(4): p.i(f'v_add_f32 v{regs[i]}, v{regs[i]}, v{160+i}')
    def accidx(self, tg, tgs): return tgs.index(tg)

    def kv_epilogue(self, acc):
        p = self.p
        p.i('s_lshl_b32 s57, s56, 11')
        p.i(f's_add_u32 s57, s57, {L_KVF}')
        p.i(f'v_add_u32 v27, s57, {v(V_L16)}')
        for kap in range(2):
            for h in range(2):
                b = acc + 4*(2*kap+h)
                p.i(f'v_cvt_pk_bf16_f32 v{164+2*h}, v{b}, v{b+1}')
                p.i(f'v_cvt_pk_bf16_f32 v{165+2*h}, v{b+2}, v{b+3}')
            p.ds(f'ds_write_b128 v27, v[164:167] offset:{kap*1024}')
    def q_epilogue(self, acc, tgs, tg_s=None):
        p = self.p
        p.i('s_lshl_b32 s57, s56, 5')
        p.i(f's_add_u32 s57, s57, {L_PQ}')
        if tg_s is not None:
            p.i(f's_mul_i32 s58, {s(tg_s)}, {16*PQ_RS}')
            p.i('s_add_u32 s57, s57, s58')
        p.i(f'v_mul_u32_u24 v27, {4*PQ_RS}, {v(V_G)}')
        p.i(f'v_lshl_add_u32 v27, {v(V_N)}, 1, v27')
        p.i('v_add_u32 v27, s57, v27')
        for k, tg in enumerate(tgs):
            b = acc + 4*k
            p.i(f'v_cvt_pk_bf16_f32 v164, v{b}, v{b+1}')
            p.i(f'v_cvt_pk_bf16_f32 v165, v{b+2}, v{b+3}')
            base = 16*tg*PQ_RS
            p.ds(f'ds_write_b16 v27, v164 offset:{base}')
            p.ds(f'ds_write_b16_d16_hi v27, v164 offset:{base+PQ_RS}')
            p.ds(f'ds_write_b16 v27, v165 offset:{base+2*PQ_RS}')
            p.ds(f'ds_write_b16_d16_hi v27, v165 offset:{base+3*PQ_RS}')

    def qkv(self):
        p = self.p
        import struct
        f2h = lambda x: hex(struct.unpack('<I', struct.pack('<f', x))[0])
        p.i(f's_mov_b32 {s(S_LOG2E)}, {f2h(1.4426950408889634)}')
        p.i('v_mul_u32_u24 v27, 21846, v0'); p.i('v_lshrrev_b32 v27, 16, v27')
        p.i('v_mul_u32_u24 v26, 3, v27'); p.i('v_sub_u32 v26, v0, v26')
        p.i(f'v_mul_u32_u24 v27, {PQ_RS}, v27'); p.i('v_lshl_add_u32 v27, v26, 4, v27')
        p.i(f'v_add_u32 v27, {L_PQ+160}, v27')
        p.i(f'v_mov_b32 v26, {L_DUMMY}')
        p.i('v_cmp_gt_u32 vcc, 192, v0')
        p.i('v_cndmask_b32 v27, v26, v27, vcc')
        for k in range(4): p.i(f'v_mov_b32 v{164+k}, 0')
        p.ds('ds_write_b128 v27, v[164:167]')
        p.i('v_lshlrev_b32 v27, 4, v0'); p.i(f'v_add_u32 v27, {L_BD}, v27')
        for k in range(8): p.ds(f'ds_write_b128 v27, v[164:167] offset:{4096*k}')
        p.i(f'v_lshlrev_b32 v27, 4, {v(V_G)}')
        p.i(f'v_add_u32 v27, {L_TS}, v27')
        st = None
        for tg in range(4): st = p.ds(f'ds_read_b128 v[{144+4*tg}:{147+4*tg}], v27 offset:{64*tg}')
        self.poll_board_keep(WS_F0)
        self.set_flag(78)
        self.ring_init()
        for _ in range(R): self.ring_load()
        p.wait_lg(st)
        def mfN(u0, acc, tgs):
            def f(k):
                return [f'v_mfma_f32_16x16x32_bf16 {v(acc+4*q,4)}, {yreg(k,tg)}, {v(self.slot(u0+k),4)}, ' + ('0' if k == 0 else v(acc+4*q,4)) for q, tg in enumerate(tgs)]
            return f
        for ps in range(2):
            acc = ACC[ps]
            self.run_pass(18*ps, 18, mfN(18*ps, acc, [0,1,2,3]))
            p.i(f's_add_u32 s56, {s(S_W)}, {4*ps}')
            self.phi_consts(None)
            self.phi_ops(acc, [0,1,2,3])
            self.kv_epilogue(acc)
        acc = ACC[0]
        self.run_pass(36, 18, mfN(36, acc, [0,1,2,3]))
        p.i(f's_cmp_eq_u32 {s(S_W)}, 0')
        p.i('s_cselect_b32 s56, 8, 0')
        self.phi_consts(None)
        self.phi_ops(acc, [0,1,2,3])
        La, Lb = p.newlabel('Lp2'), p.newlabel('Lp2')
        p.wait_lg_all()
        st0 = p.state()
        p.i(f's_cmp_eq_u32 {s(S_W)}, 0'); p.i(f's_cbranch_scc0 {La}')
        p.i('s_mov_b32 s56, 8'); self.kv_epilogue(acc); p.wait_lg_all(); p.i(f's_branch {Lb}')
        p.label(La)
        p.set_state(st0)
        p.i(f's_sub_u32 s56, {s(S_W)}, 1'); self.q_epilogue(acc, [0,1,2,3]); p.wait_lg_all()
        p.label(Lb)
        p.i(f's_lshl_b32 s59, {s(S_J)}, 9'); p.i(f's_add_u32 s59, s59, {WS_F2}')
        p.i(f'v_lshrrev_b32 v170, 1, {v(V_L16)}')
        f2tag = p.vm(f'buffer_load_dwordx2 v[168:169], v170, {s(SRD_WS,4)}, s59 offen sc1')
        acc = ACC[1]
        La, Lb = p.newlabel('Lp3'), p.newlabel('Lp3')
        p.i(f's_and_b32 s58, {s(S_W)}, 1')
        st0 = p.state(); rs = (dict(self.rtag), self.rnext)
        p.i('s_cmp_eq_u32 s58, 0'); p.i(f's_cbranch_scc0 {La}')
        self.run_pass(54, 18, mfN(54, acc, [0,1]))
        p.i('s_mov_b32 s56, 0'); self.phi_consts(None); self.phi_ops(acc, [0,1])
        p.i(f's_branch {Lb}')
        st1 = p.state()
        p.label(La)
        p.set_state(st0); self.rtag, self.rnext = dict(rs[0]), rs[1]
        self.run_pass(54, 18, mfN(54, acc, [2,3]))
        p.i('s_mov_b32 s56, 0'); self.phi_consts(None); self.phi_ops(acc, [2,3])
        assert p.state() == st1, (p.state(), st1)
        p.label(Lb)
        p.i(f's_lshr_b32 s56, {s(S_W)}, 1'); p.i('s_add_u32 s56, s56, 3')
        p.i(f's_and_b32 s59, {s(S_W)}, 1'); p.i('s_lshl_b32 s59, s59, 1')
        self.q_epilogue(acc, [0,1], tg_s=59)
        self.poll_check(f2tag, 168, 170, WS_F2)
        self.f2_checked = True
        p.barrier()
        p.i(f's_lshl_b32 s56, {s(S_W)}, 11'); p.i(f's_add_u32 s56, s56, {L_KVF}')
        p.i(f'v_add_u32 v27, s56, {v(V_L16)}')
        A_, B_ = 144, 160
        tags = []
        for al in range(2):
            for kap in range(2):
                p.ds(f'ds_read_b128 v[{A_+8*al+4*kap}:{A_+8*al+4*kap+3}], v27 offset:{al*2048+kap*1024}')
        for be in range(2):
            for kap in range(2):
                p.ds(f'ds_read_b128 v[{B_+8*be+4*kap}:{B_+8*be+4*kap+3}], v27 offset:{(4+be)*2048+kap*1024}')
        for k in range(4): p.i(f'v_mov_b32 v{24+k}, {s(S_ONES)}')
        p.wait_lg_all()
        D = 32
        for kap in range(2):
            for al in range(2):
                for be in range(2):
                    d = D + 4*(2*al+be)
                    p.i(f'v_mfma_f32_16x16x32_bf16 {v(d,4)}, {v(A_+8*al+4*kap,4)}, {v(B_+8*be+4*kap,4)}, ' + ('0' if kap == 0 else v(d,4)))
                d = D + 16 + 4*al
                p.i(f'v_mfma_f32_16x16x32_bf16 {v(d,4)}, {v(A_+8*al+4*kap,4)}, v[24:27], ' + ('0' if kap == 0 else v(d,4)))
        p.i(f's_mul_i32 s56, {s(S_W)}, {18*20*4}'); p.i(f's_add_u32 s56, s56, {L_KVL}')
        p.i(f's_lshl_b32 s57, {s(S_W)}, 1')
        p.i(f'v_lshlrev_b32 v20, 2, {v(V_G)}'); p.i('v_subrev_u32 v20, s57, v20')
        p.i(f'v_subrev_u32 v21, s57, {v(V_N)}')
        p.i(f'v_mov_b32 v22, {L_DUMMY}')
        p.i(f'v_cmp_eq_u32 s[60:61], 0, {v(V_N)}')
        for al in range(2):
            for i in range(4):
                p.i(f'v_add_u32 v23, {16*al+i}, v20')
                p.i('v_cmp_gt_u32 s[62:63], 18, v23')
                p.i('v_mul_u32_u24 v23, 80, v23')
                p.i('v_add_u32 v23, s56, v23')
                for be in range(2):
                    p.i(f'v_add_u32 v24, {(16*be-8) & 0xffffffff}, v21')
                    p.i('v_cmp_gt_u32 vcc, 18, v24')
                    p.i('s_and_b64 vcc, vcc, s[62:63]')
                    p.i('v_lshl_add_u32 v24, v24, 2, v23')
                    p.i('v_cndmask_b32 v24, v22, v24, vcc')
                    p.ds(f'ds_write_b32 v24, v{D+4*(2*al+be)+i}')
                p.i('s_and_b64 vcc, s[60:61], s[62:63]')
                p.i('v_add_u32 v24, 72, v23')
                p.i('v_cndmask_b32 v24, v22, v24, vcc')
                p.ds(f'ds_write_b32 v24, v{D+16+4*al+i}')
        p.barrier()
        p.i(f's_lshl_b32 s56, {s(S_J)}, 13'); p.i(f's_add_u32 s56, s56, {WS_KVG}')
        p.i('s_add_u32 s48, s24, s56'); p.i('s_addc_u32 s49, s25, 0'); p.i('s_mov_b32 s50, 5760'); p.i('s_mov_b32 s51, 0x20000')
        p.i('v_lshlrev_b32 v20, 2, v0')
        p.i(f'v_add_u32 v21, {L_KVL}, v20')
        tg_ = [p.ds(f'ds_read_b32 v{144+m}, v21 offset:{m*1024}') for m in range(6)]
        for m in range(6):
            p.wait_lg(tg_[m])
            if m == 4: p.i('v_add_u32 v20, 4096, v20')
            self.atom_tag = p.vm(f'buffer_atomic_add_f32 v{144+m}, v20, {s(SRD_B,4)}, 0 offen offset:{(m%4)*1024}')

    def poll_board_keep(self, off):
        self.poll_board(off)

    def poll_check(self, tag, dreg, areg, off):
        p = self.p
        Lok, Lsp = p.newlabel('Lok'), p.newlabel('Lsp')
        p.wait_vm(tag)
        p.label(Lsp)
        p.i(f'v_cmp_ne_u32 vcc, {s(S_NONCE)}, v{dreg}')
        p.i(f'v_cmp_ne_u32 {s(S_T+2,2)}, {s(S_NONCE)}, v{dreg+1}')
        p.i('s_nop 1')
        p.i(f's_or_b64 vcc, vcc, {s(S_T+2,2)}')
        p.i('s_cmp_eq_u64 vcc, 0')
        p.i(f's_cbranch_scc1 {Lok}')
        p.i(f's_lshl_b32 {s(S_T)}, {s(S_J)}, 9'); p.i(f's_add_u32 {s(S_T)}, {s(S_T)}, {off}')
        p.i(f'buffer_load_dwordx2 v[{dreg}:{dreg+1}], v{areg}, {s(SRD_WS,4)}, {s(S_T)} offen sc1')
        p.i('s_waitcnt vmcnt(0)')
        p.i(f's_branch {Lsp}')
        p.label(Lok)

    def gelu_fillers(self, prev, pidx):
        p = self.p
        F = []
        half = pidx % 2
        HPK = 152
        def I(txt, c=4): F.append((c, lambda t=txt: p.i(t)))
        for tg in range(4):
            t = 4 + 4*(tg % 2)
            x = prev + 4*tg
            for i in range(4): I(f'v_mul_f32 v{t+i}, v{x+i}, v{x+i}')
            for i in range(4): I(f'v_fma_f32 v{t+i}, v{t+i}, {s(S_C1)}, v16')
            for i in range(4): I(f'v_mul_f32 v{t+i}, v{t+i}, v{x+i}')
            for i in range(4): I(f'v_exp_f32 v{t+i}, v{t+i}', 8)
            for i in range(4): I(f'v_add_f32 v{t+i}, 1.0, v{t+i}')
            for i in range(4): I(f'v_rcp_f32 v{t+i}, v{t+i}', 8)
            for i in range(4): I(f'v_mul_f32 v{t+i}, v{t+i}, v{x+i}')
            h = HPK + 4*tg + 2*half
            I(f'v_cvt_pk_bf16_f32 v{h}, v{t}, v{t+1}')
            I(f'v_cvt_pk_bf16_f32 v{h+1}, v{t+2}, v{t+3}')
            if pidx == 8:
                F.append((8, lambda tg=tg, h=h: p.ds(f'ds_write_b64 v19, v[{h}:{h+1}] offset:{tg*1024}')))
            elif half == 1:
                F.append((8, lambda tg=tg: p.ds(f'ds_write_b128 v18, v[{HPK+4*tg}:{HPK+4*tg+3}] offset:{(pidx//2)*16384 + tg*1024}')))
        return F

    def gemm1(self):
        p = self.p
        import struct
        f2h = lambda x: hex(struct.unpack('<I', struct.pack('<f', x))[0])
        c0 = 2*0.7978845608028654*1.4426950408889634
        p.i(f's_mov_b32 {s(S_C1)}, {f2h(-c0*0.044715)}')
        p.i(f'v_mov_b32 v16, {f2h(-c0)}')
        p.i(f's_lshl_b32 s56, {s(S_W)}, 6'); p.i(f's_add_u32 s56, s56, {L_TB1}')
        p.i(f'v_lshlrev_b32 v17, 4, {v(V_G)}'); p.i('v_add_u32 v17, s56, v17')
        p.i(f's_lshl_b32 s56, {s(S_W)}, 12'); p.i(f's_add_u32 s56, s56, {L_HF}')
        p.i(f'v_add_u32 v18, s56, {v(V_L16)}')
        p.i(f's_lshr_b32 s56, {s(S_W)}, 1'); p.i('s_lshl_b32 s56, s56, 12'); p.i(f's_and_b32 s57, {s(S_W)}, 1'); p.i('s_lshl_b32 s57, s57, 3')
        p.i('s_add_u32 s56, s56, s57'); p.i(f's_add_u32 s56, s56, {L_HF + 16*4096}')
        p.i(f'v_add_u32 v19, s56, {v(V_L16)}')
        BIAS = [144, 148]
        btag = p.ds(f'ds_read_b128 v[{BIAS[0]}:{BIAS[0]+3}], v17')
        for ps in range(9):
            acc = ACC[ps % 2]; u0 = U_G1 + 18*ps
            F = []
            nb = {}
            if ps < 8:
                F.append((4, lambda ps=ps: nb.__setitem__('t', p.ds(f'ds_read_b128 v[{BIAS[(ps+1)%2]}:{BIAS[(ps+1)%2]+3}], v17 offset:{256*(ps+1)}'))))
            if ps > 0: F += self.gelu_fillers(ACC[(ps-1) % 2], ps-1)
            if ps == 8:
                def fa():
                    p.i(f's_lshl_b32 s59, {s(S_J)}, 9'); p.i(f's_add_u32 s59, s59, {WS_FA}')
                    p.i(f'v_lshrrev_b32 v170, 1, {v(V_L16)}')
                    self.fatag = p.vm(f'buffer_load_dwordx2 v[168:169], v170, {s(SRD_WS,4)}, s59 offen sc1')
                F.append((8, fa))
            p.wait_lg(btag)
            def mf(k, acc=acc, u0=u0, ps=ps):
                return [f'v_mfma_f32_16x16x32_bf16 {v(acc+4*tg,4)}, {v(self.slot(u0+k),4)}, {yreg(k,tg)}, ' + (v(BIAS[ps%2],4) if k == 0 else v(acc+4*tg,4)) for tg in range(4)]
            self.run_pass(u0, 18, mf, F, start=3, tail=2)
            btag = nb.get('t')
            if ps == 1:
                p.wait_vm(self.atom_tag)
                p.i(f's_sub_u32 s56, s78, {WS_F2 - WS_FA}' if WS_F2 >= WS_FA else f's_add_u32 s56, s78, {WS_FA - WS_F2}')
                self.set_flag(56)
        for c, f in self.gelu_fillers(ACC[0], 8): f()

    def attention(self):
        p = self.p
        import struct
        f2h = lambda x: hex(struct.unpack('<I', struct.pack('<f', x))[0])
        self.poll_check(self.fatag, 168, 170, WS_FA)
        p.i(f's_lshl_b32 s56, {s(S_J)}, 13'); p.i(f's_add_u32 s56, s56, {WS_KVG}')
        p.i('s_add_u32 s48, s24, s56'); p.i('s_addc_u32 s49, s25, 0'); p.i('s_mov_b32 s50, 5760'); p.i('s_mov_b32 s51, 0x20000')
        tags = []
        for m in range(6):
            e, row, col, t = 20, 21, 22, 23
            p.i(f'v_add_u32 v{e}, {256*m}, v0')
            p.i(f'v_mul_u32_u24 v{row}, 3277, v{e}'); p.i(f'v_lshrrev_b32 v{row}, 16, v{row}')
            p.i(f'v_mul_u32_u24 v{col}, 20, v{row}'); p.i(f'v_sub_u32 v{col}, v{e}, v{col}')
            p.i(f'v_lshlrev_b32 v{t}, 2, v{e}')
            p.vm(f'buffer_load_dword v{144+2*m}, v{t}, {s(SRD_B,4)}, 0 offen sc1')
            p.i(f'v_mul_u32_u24 v{t}, 80, v{row}')
            tags.append(p.vm(f'buffer_load_dword v{145+2*m}, v{t}, {s(SRD_B,4)}, 0 offen offset:72 sc1'))
            p.i(f'v_mul_u32_u24 v{t}, 3641, v{row}'); p.i(f'v_lshrrev_b32 v{t}, 16, v{t}')
            p.i(f'v_mad_u32_u24 v{t}, v{t}, 18, v{col}')
            p.i(f'v_mul_u32_u24 v{t}, {BD_RS}, v{t}')
            p.i(f'v_lshl_add_u32 v{t}, v{row}, 1, v{t}')
            p.i(f'v_add_u32 v{t}, {L_BD}, v{t}')
            p.i(f'v_cmp_gt_u32 vcc, 18, v{col}')
            p.i('s_mov_b32 s62, 72')
            p.i(f'v_cmp_gt_u32 s[60:61], s62, v{row}')
            p.i('s_and_b64 vcc, vcc, s[60:61]')
            p.i(f'v_mov_b32 v24, {L_DUMMY}')
            p.i(f'v_cndmask_b32 v{4+m}, v24, v{t}, vcc')
            p.i(f'v_add_u32 v25, {L_ZD - L_BD}, v{t}')
            p.i(f'v_cndmask_b32 v{10+m}, v24, v25, vcc')
        for m in range(6):
            p.wait_vm(tags[m])
            p.i(f'v_cvt_pk_bf16_f32 v{144+2*m}, v{144+2*m}, v{145+2*m}')
            p.ds(f'ds_write_b16 v{4+m}, v{144+2*m}')
            p.ds(f'ds_write_b16_d16_hi v{10+m}, v{144+2*m}')
        p.barrier()
        p.i(f's_mul_i32 s56, {s(S_W)}, {16*PQ_RS}'); p.i(f's_add_u32 s56, s56, {L_PQ}')
        p.i(f'v_mul_u32_u24 v20, {PQ_RS}, {v(V_N)}'); p.i(f'v_lshl_add_u32 v20, {v(V_G)}, 4, v20'); p.i('v_add_u32 v20, s56, v20')
        for k in range(3): p.ds(f'ds_read_b128 {a(72+4*k,4)}, v20 offset:{64*k}')
        p.i(f'v_mul_u32_u24 v20, {BD_RS}, {v(V_N)}'); p.i(f'v_lshl_add_u32 v20, {v(V_G)}, 4, v20'); p.i(f'v_add_u32 v20, {L_BD}, v20')
        pairs = [(0,0),(1,0),(1,1),(2,0),(2,1),(3,1),(3,2),(4,1),(4,2)]
        for idx, (t, k) in enumerate(pairs):
            p.ds(f'ds_read_b128 {a(8*idx,4)}, v20 offset:{16*t*BD_RS + 64*k}')
            p.ds(f'ds_read_b128 {a(8*idx+4,4)}, v20 offset:{L_ZD - L_BD + 16*t*BD_RS + 64*k}')
        p.wait_lg_all()
        NUM, DEN = 32, 144
        first = set()
        for idx, (t, k) in enumerate(pairs):
            c1 = '0' if t not in first else v(NUM+4*t,4)
            c2 = '0' if t not in first else v(DEN+4*t,4)
            p.i(f'v_mfma_f32_16x16x32_bf16 {v(NUM+4*t,4)}, {a(8*idx,4)}, {a(72+4*k,4)}, {c1}')
            p.i(f'v_mfma_f32_16x16x32_bf16 {v(DEN+4*t,4)}, {a(8*idx+4,4)}, {a(72+4*k,4)}, {c2}')
            first.add(t)
        p.i(f's_mov_b32 s56, {f2h(1e-6)}')
        for t in range(5):
            for i in range(4): p.i(f'v_add_f32 v{DEN+4*t+i}, s56, v{DEN+4*t+i}')
        for t in range(5):
            for i in range(4): p.i(f'v_rcp_f32 v{DEN+4*t+i}, v{DEN+4*t+i}')
        for t in range(5):
            for i in range(4): p.i(f'v_mul_f32 v{NUM+4*t+i}, v{NUM+4*t+i}, v{DEN+4*t+i}')
        O = 4
        for t in range(5):
            p.i(f'v_cvt_pk_bf16_f32 v{O+2*t}, v{NUM+4*t}, v{NUM+4*t+1}')
            p.i(f'v_cvt_pk_bf16_f32 v{O+2*t+1}, v{NUM+4*t+2}, v{NUM+4*t+3}')
        p.i(f'v_mov_b32 v{O+10}, 0'); p.i(f'v_mov_b32 v{O+11}, 0')
        p.i(f's_lshl_b32 s56, {s(S_W)}, 10'); p.i(f's_add_u32 s56, s56, {L_OF}')
        p.i(f'v_add_u32 v20, s56, {v(V_L16)}')
        for k in range(3): p.ds(f'ds_write_b128 v20, v[{O+4*k}:{O+4*k+3}] offset:{k*4096}')
        p.barrier()

    def gemm2(self):
        p = self.p
        p.i(f'v_add_u32 v20, {L_HF}, {v(V_L16)}'); p.i('v_add_u32 v21, 0x10000, v20')
        for f in range(84):
            off = f*1024
            if off < 65536: p.ds(f'ds_read_b128 {breg(f)}, v20 offset:{off}')
            else: p.ds(f'ds_read_b128 {breg(f)}, v21 offset:{off-65536}')
            if f % 12 == 11: p.wait_lg(p.lg_issued - 4)
        p.i(f's_lshl_b32 s74, {s(S_I)}, 6'); p.i(f's_add_u32 s74, s74, {s(S_J)}'); p.i('s_lshl_b32 s74, s74, 2'); p.i(f's_add_u32 s74, s74, {s(S_W)}')
        p.i('s_lshl_b32 s74, s74, 11'); p.i(f's_add_u32 s74, s74, {WS_PX}')
        p.i(f's_lshl_b32 s75, {s(S_I)}, 6'); p.i(f's_add_u32 s75, s75, {s(S_J)}'); p.i('s_lshl_b32 s75, s75, 10'); p.i(f's_add_u32 s75, s75, {WS_PS}')
        p.i(f's_lshl_b32 s76, {s(S_I)}, 5'); p.i(f's_add_u32 s76, s76, {s(S_W)}'); p.i('s_lshl_b32 s76, s76, 3'); p.i(f's_add_u32 s76, s76, {s(S_J)}')
        p.i('s_lshl_b32 s76, s76, 7'); p.i(f's_add_u32 s76, s76, {WS_XF}')
        p.wait_lg_all()
        PK = 144; KEEP = 152
        st_tags = {}
        flagged = set()
        def fill(q):
            acc = ACC[q % 2]; F = []
            def I(txt, c=4): F.append((c, lambda t=txt: p.i(t)))
            if q == 0:
                def keep():
                    La, Lb = p.newlabel('Lk'), p.newlabel('Lk')
                    p.i(f's_and_b32 s56, {s(S_J)}, 1'); p.i('s_cmp_eq_u32 s56, 0'); p.i(f's_cbranch_scc0 {La}')
                    for r in range(8): p.i(f'v_mov_b32 v{KEEP+r}, v{acc+r}')
                    p.i(f's_branch {Lb}'); p.label(La)
                    for r in range(8): p.i(f'v_mov_b32 v{KEEP+r}, v{acc+8+r}')
                    p.label(Lb)
                F.append((40, keep))
            for tg in range(4):
                I(f'v_cvt_pk_bf16_f32 v{PK+2*tg}, v{acc+4*tg}, v{acc+4*tg+1}')
                I(f'v_cvt_pk_bf16_f32 v{PK+2*tg+1}, v{acc+4*tg+2}, v{acc+4*tg+3}')
            def stores():
                if q == 0:
                    p.i(f's_lshl_b32 s56, {s(S_W)}, 14'); p.i('s_add_u32 s56, s56, s75')
                    p.vm(f'buffer_store_dwordx4 v[{PK}:{PK+3}], {v(V_L16)}, {s(SRD_WS,4)}, s56 offen sc1')
                    p.i('s_add_u32 s56, s56, 8192')
                    st_tags[q] = p.vm(f'buffer_store_dwordx4 v[{PK+4}:{PK+7}], {v(V_L16)}, {s(SRD_WS,4)}, s56 offen sc1')
                else:
                    p.i(f's_add_u32 s56, {s(S_J)}, {q}'); p.i('s_and_b32 s56, s56, 7'); p.i('s_lshl_b32 s56, s56, 16'); p.i('s_add_u32 s56, s56, s74')
                    p.vm(f'buffer_store_dwordx4 v[{PK}:{PK+3}], {v(V_L16)}, {s(SRD_WS,4)}, s56 offen sc1')
                    st_tags[q] = p.vm(f'buffer_store_dwordx4 v[{PK+4}:{PK+7}], {v(V_L16)}, {s(SRD_WS,4)}, s56 offen offset:1024 sc1')
            F.append((24, stores))
            return F
        def flag(q):
            p.wait_vm(st_tags[q])
            p.i(f's_add_u32 s56, {s(S_J)}, {q}'); p.i('s_and_b32 s56, s56, 7'); p.i('s_lshl_b32 s56, s56, 12'); p.i('s_add_u32 s56, s56, s76')
            self.set_flag(56)
            flagged.add(q)
        for q in range(9):
            acc = ACC[q % 2]; u0 = U_G2 + 21*q
            F = fill(q-1) if q > 0 else []
            def mf(k, acc=acc, u0=u0):
                return [f'v_mfma_f32_16x16x32_bf16 {v(acc+4*tg,4)}, {v(self.slot(u0+k),4)}, {breg(k*4+tg)}, ' + ('0' if k == 0 else v(acc+4*tg,4)) for tg in range(4)]
            self.run_pass(u0, 21, mf, F, start=3, tail=60)
            for qq in range(1, q):
                if qq not in flagged and st_tags[qq] <= p.vm_done: flag(qq)
        self.final(st_tags, flagged, flag, KEEP)

    def final(self, st_tags, flagged, flag, KEEP):
        p = self.p
        acc = ACC[0]
        self.srd(SRD_OUT, 20, 21, 2048*1152)
        p.i('s_mov_b32 s48, s18'); p.i('s_mov_b32 s49, s19'); p.i('s_mov_b32 s50, 1152'); p.i('s_mov_b32 s51, 0x20000')
        p.i(f's_lshl_b32 s56, {s(S_I)}, 6'); p.i(f'v_add_u32 v20, s56, {v(V_N)}'); p.i('v_mul_u32_u24 v20, 1152, v20')
        p.i(f's_lshl_b32 s56, {s(S_J)}, 2'); p.i(f's_add_u32 s56, s56, {s(S_W)}'); p.i('s_lshl_b32 s56, s56, 5')
        p.i(f'v_lshlrev_b32 v21, 3, {v(V_G)}'); p.i('v_add_u32 v21, s56, v21')
        p.i('v_add_u32 v22, v20, v21')
        p.i(f's_lshl_b32 s57, {s(S_W)}, 5'); p.i('s_add_u32 s57, s57, 1024')
        p.i(f'v_lshlrev_b32 v23, 3, {v(V_G)}'); p.i('v_add_u32 v23, s57, v23')
        p.i(f's_and_b32 s58, {s(S_J)}, 1'); p.i(f's_mul_i32 s58, s58, {32*1152}')
        p.i('v_add3_u32 v24, v20, v23, s58')
        p.i(f's_lshr_b32 s59, {s(S_J)}, 1'); p.i(f's_cmp_eq_u32 s59, {s(S_W)}'); p.i('s_cselect_b32 s59, 0, 0x70000000')
        X = 4
        for tg in range(4):
            p.i(f's_mov_b32 s60, {18432*tg}')
            p.vm(f'buffer_load_dwordx2 v[{X+2*tg}:{X+2*tg+1}], v22, {s(SRD_X,4)}, s60 offen')
        for tg in range(2):
            p.i(f's_add_u32 s60, s59, {18432*tg}')
            p.vm(f'buffer_load_dwordx2 v[{X+8+2*tg}:{X+9+2*tg}], v24, {s(SRD_X,4)}, s60 offen')
        p.vm(f'buffer_load_dwordx2 v[16:17], v21, {s(SRD_B,4)}, 0 offen')
        xt = p.vm(f'buffer_load_dwordx2 v[18:19], v23, {s(SRD_B,4)}, 0 offen')
        for q in range(1, 8):
            if q not in flagged: flag(q)
        p.i(f's_lshl_b32 s56, {s(S_I)}, 3'); p.i(f's_add_u32 s56, s56, {s(S_J)}'); p.i('s_lshl_b32 s56, s56, 2'); p.i(f's_add_u32 s56, s56, {s(S_W)}')
        p.i('s_lshl_b32 s56, s56, 10'); p.i(f's_add_u32 s56, s56, {WS_XF}')
        p.i(f'v_lshlrev_b32 v25, 3, {v(V_L16)}')
        p.i(f's_lshl_b32 s57, 1, {s(S_J)}'); p.i('s_xor_b32 s57, s57, 0xff')
        L = p.newlabel('Lx')
        p.i('s_mov_b32 exec_hi, 0'); p.i('s_mov_b32 exec_lo, s57')
        p.label(L)
        p.vm(f'buffer_load_dword v26, v25, {s(SRD_WS,4)}, s56 offen sc1')
        p.wait_vm_all()
        p.i(f'v_cmp_ne_u32 vcc, {s(S_NONCE)}, v26')
        p.i('s_nop 1')
        p.i('s_cmp_eq_u64 vcc, 0')
        p.i(f's_cbranch_scc0 {L}')
        p.i('s_mov_b64 exec, -1')
        PB = 64
        p.i(f's_lshl_b32 s60, {s(S_I)}, 3'); p.i(f's_add_u32 s60, s60, {s(S_J)}')
        p.i('s_lshl_b32 s61, s60, 16'); p.i(f's_add_u32 s61, s61, {WS_PX}'); p.i(f's_lshl_b32 s62, {s(S_W)}, 11'); p.i('s_add_u32 s61, s61, s62')
        p.i('s_lshl_b32 s62, s60, 13'); p.i(f's_add_u32 s62, s62, {WS_PS}'); p.i('s_add_u32 s62, s62, s59')
        tags = []
        for d in range(1, 8):
            p.i(f's_add_u32 s56, {s(S_J)}, {d}'); p.i('s_and_b32 s56, s56, 7')
            p.i('s_lshl_b32 s57, s56, 13'); p.i('s_add_u32 s57, s57, s61')
            b = PB + 12*(d-1)
            p.vm(f'buffer_load_dwordx4 v[{b}:{b+3}], {v(V_L16)}, {s(SRD_WS,4)}, s57 offen sc1')
            p.vm(f'buffer_load_dwordx4 v[{b+4}:{b+7}], {v(V_L16)}, {s(SRD_WS,4)}, s57 offen offset:1024 sc1')
            p.i('s_lshl_b32 s57, s56, 10'); p.i('s_add_u32 s57, s57, s62')
            tags.append(p.vm(f'buffer_load_dwordx4 v[{b+8}:{b+11}], {v(V_L16)}, {s(SRD_WS,4)}, s57 offen sc1'))
        p.i('s_mov_b32 s56, 0x3f80'); p.i('s_mov_b32 s57, 0x3f800000')
        def addpair(dst, src):
            p.i(f'v_dot2_f32_bf16 v{dst}, v{src}, s56, v{dst}')
            p.i(f'v_dot2_f32_bf16 v{dst+1}, v{src}, s57, v{dst+1}')
        for tg in range(4):
            for h in range(2):
                addpair(acc+4*tg+2*h, X+2*tg+h)
                addpair(acc+4*tg+2*h, 16+h)
        for tg in range(2):
            for h in range(2):
                addpair(KEEP+4*tg+2*h, X+8+2*tg+h)
                addpair(KEEP+4*tg+2*h, 18+h)
        for d in range(1, 8):
            p.wait_vm(tags[d-1])
            b = PB + 12*(d-1)
            for tg in range(4):
                for h in range(2): addpair(acc+4*tg+2*h, b+2*tg+h)
            for tg in range(2):
                for h in range(2): addpair(KEEP+4*tg+2*h, b+8+2*tg+h)
        for tg in range(4):
            p.i(f'v_cvt_pk_bf16_f32 v{X+2*tg}, v{acc+4*tg}, v{acc+4*tg+1}')
            p.i(f'v_cvt_pk_bf16_f32 v{X+2*tg+1}, v{acc+4*tg+2}, v{acc+4*tg+3}')
        for tg in range(2):
            p.i(f'v_cvt_pk_bf16_f32 v{X+8+2*tg}, v{KEEP+4*tg}, v{KEEP+4*tg+1}')
            p.i(f'v_cvt_pk_bf16_f32 v{X+9+2*tg}, v{KEEP+4*tg+2}, v{KEEP+4*tg+3}')
        for tg in range(4):
            p.i(f's_mov_b32 s60, {18432*tg}')
            p.vm(f'buffer_store_dwordx2 v[{X+2*tg}:{X+2*tg+1}], v22, {s(SRD_OUT,4)}, s60 offen')
        for tg in range(2):
            p.i(f's_add_u32 s60, s59, {18432*tg}')
            p.vm(f'buffer_store_dwordx2 v[{X+8+2*tg}:{X+9+2*tg}], v24, {s(SRD_OUT,4)}, s60 offen')
        p.i(f's_or_b32 s56, s2, {s(S_W)}'); p.i('s_cmp_eq_u32 s56, 0'); p.i(f's_mov_b32 s57, {WS_NONCE}'); p.i('s_cselect_b32 s56, s57, 0x70000000')
        self.set_flag(56)

    def build(self):
        p = self.p
        self.prologue()
        if self.stop == 'prologue':
            p.wait_vm(self.st_last_unit)
            self.set_flag(78)
            regs = []
            for k in (0, 1, 17):
                for tg in range(4):
                    r = yreg(k, tg)
                    f, lo = r[0], int(r[2:r.index(':')])
                    regs += [f'{f}{lo+q}' for q in range(4)]
            self.dump_regs(regs + ['v137', 'v138', 'v140', 'v136'], 0)
            self.dump_lds(L_Y, 73728+4096)
            p.wait_vm_all()
            self.end(); return
        self.f2_checked = False
        self.qkv()
        if self.stop == 'qkv':
            p.wait_vm_all()
            self.dump_lds(L_Y, 40960)
            p.wait_vm_all()
            self.end(); return
        self.gemm1()
        if self.stop == 'g1':
            p.wait_vm_all()
            self.dump_lds(L_HF, 73728)
            p.wait_vm_all()
            self.end(); return
        self.attention()
        if self.stop == 'att':
            p.wait_vm_all()
            self.dump_lds(L_HF, 86016)
            p.wait_vm_all()
            self.end(); return
        self.gemm2()
        self.end()

    def finish(self):
        p = self.p
        nh = p.fix_hazards_fast(verbose=self.cfg.get('verbose', False))
        if self.cfg.get('align', True):
            nprom, nnop, size = p.align8()
        else:
            p.compute_sizes(); size = sum(I.size for I in p.ins); nprom = nnop = 0
        off = 0; base = None
        for I in p.ins:
            if I.kind in ('label', 'comment'): continue
            off += I.size
            if I.op == 's_getpc_b64' and base is None: base = off
        last = off - base - 4
        for I in p.ins:
            if I.note in ('CODEWARM0', 'CODEWARM1'):
                I.text = I.text.replace('0x7ffffff0', hex(last))
        sys.stderr.write(f'hazard nops {nh}, align promoted {nprom} nops {nnop}, code bytes {off}, max vm outstanding {p.max_vm_out}\n')
        hdr = open('parallel_sum__linear_attn_block__mixer_channel_mlp__prompt.s.ref').read().split('\n')
        out = []
        for line in hdr:
            if line.startswith('; @launch'): out.append(f'; @launch grid=(256,1,1) block=(256,1,1) lds={LDS_SIZE}')
            elif line.startswith(';'): out.append(line)
            else: break
        out.append('.amdgcn_target "amdgcn-amd-amdhsa--gfx950"')
        out.append('.text')
        out.append(f'.globl {KNAME}')
        out.append('.p2align 8')
        out.append(f'.type {KNAME},@function')
        out.append(f'{KNAME}:')
        out.append(p.text())
        out.append('.section .rodata,"a"')
        out.append('.p2align 6')
        out.append(f'.amdhsa_kernel {KNAME}')
        out.append('  .amdhsa_next_free_vgpr 512')
        out.append('  .amdhsa_next_free_sgpr 102')
        out.append('  .amdhsa_accum_offset 256')
        out.append('  .amdhsa_group_segment_fixed_size 0')
        out.append('  .amdhsa_kernarg_size 88')
        out.append('  .amdhsa_user_sgpr_count 2')
        out.append('  .amdhsa_user_sgpr_kernarg_segment_ptr 1')
        out.append('  .amdhsa_system_sgpr_workgroup_id_x 1')
        out.append('  .amdhsa_float_denorm_mode_32 3')
        out.append('.end_amdhsa_kernel')
        return '\n'.join(out) + '\n'

if __name__ == '__main__':
    cfg = json.loads(sys.argv[2]) if len(sys.argv) > 2 else {}
    g = Gen(cfg)
    g.build()
    open(sys.argv[1], 'w').write(g.finish())
```

```python
import sys, json, struct
from asmlib import *

KNAME = 'parallel_sum__linear_attn_block__mixer_channel_mlp__prompt_kernel'
f2h = lambda x: hex(struct.unpack('<I', struct.pack('<f', x))[0])

NQ, NG1, NG2 = 72, 162, 189
NU = NQ + NG1 + NG2
U_G1 = NQ; U_G2 = NQ + NG1
WS_PX = 0x1000000
WS_PS = 0x2000000
WS_F0 = 0x2200000; WS_F2 = 0x2201000; WS_FA = 0x2202000; WS_F1 = 0x2203000; WS_NONCE = 0x2208000
WS_XF = 0x2300000
WS_KVG = 0x2400000
WS_DBG = 0x2800000
WS_DBG2 = 0x4000000
WS_SIZE = 0x2500000
OOB = 0x70000000
SPIN_MAX = 200000
L_HF = 0
L_OF = 73728
L_Y = 86016
L_STG = 24576
L_KVF = 0
L_KVL = 18432
L_PQ = L_Y
PQ_RS = 208
L_BD = L_Y + 16384
L_ZD = L_BD + 15360
L_DUM2 = L_Y + 49152
BD_RS = 192
L_TB1 = 159744
L_TS = L_TB1 + 2304
L_DUMMY = L_TS + 256
LDS_SIZE = 163840

S_W, S_J, S_I, S_NONCE = 26, 27, 28, 29
SRD_WS, SRD_SRC, SRD_X, SRD_OUT, SRD_B = 32, 36, 40, 44, 48
S_T = 52
S_STR = 80
S_C1, S_LOG2E, S_ONES = 82, 83, 84
S_FSLOT = 85
V_L16 = 1
V_N, V_G = 2, 3
ACC = [32, 48]
RING = 64; R = 20
VB = 176

def s(n, c=1): return f's{n}' if c == 1 else f's[{n}:{n+c-1}]'
def v(n, c=1): return f'v{n}' if c == 1 else f'v[{n}:{n+c-1}]'
def a(n, c=1): return f'a{n}' if c == 1 else f'a[{n}:{n+c-1}]'
def breg(f):
    if f < 64: return a(4*f, 4)
    return v(VB + 4*(f-64), 4)
def yreg(sidx, tg):
    f = sidx*4 + tg
    if f < 64: return a(4*f, 4)
    return v(224 + 4*(f-64), 4)
MF = 'v_mfma_f32_16x16x32_bf16'

class Gen:
    def __init__(self, cfg):
        self.cfg = cfg
        self.p = Prog()
        self.stop = cfg.get('stop', None)
        self.ws_size = 0x8000000 if (cfg.get('debug') or cfg.get('prof')) else WS_SIZE
        self.stamps = []

    def srd(self, dst, lo, hi, size):
        p = self.p
        p.i(f's_mov_b32 {s(dst)}, {s(lo)}'); p.i(f's_mov_b32 {s(dst+1)}, {s(hi)}')
        p.i(f's_mov_b32 {s(dst+2)}, {size}'); p.i(f's_mov_b32 {s(dst+3)}, 0x20000')

    def board_issue(self, off, d=168):
        p = self.p
        p.i(f's_lshl_b32 {s(S_T)}, {s(S_J)}, 9'); p.i(f's_add_u32 {s(S_T)}, {s(S_T)}, {off}')
        p.i(f'v_lshrrev_b32 v{d+2}, 2, {v(V_L16)}'); p.i(f'v_and_b32 v{d+2}, 0x7c, v{d+2}')
        return p.vm(f'buffer_load_dword v{d}, v{d+2}, {s(SRD_WS,4)}, {s(S_T)} offen sc1')

    def board_check(self, tag, off, d=168):
        p = self.p
        Lok, Lsp = p.newlabel('Lok'), p.newlabel('Lsp')
        p.wait_vm(tag)
        p.i(f's_cmp_eq_u32 {s(S_W)}, 0'); p.i(f's_cbranch_scc0 {Lok}')
        p.i(f's_mov_b32 {s(S_T+1)}, {SPIN_MAX}')
        p.label(Lsp)
        p.i(f'v_cmp_ne_u32 vcc, {s(S_NONCE)}, v{d}')
        p.i('s_nop 1')
        p.i('s_cmp_eq_u64 vcc, 0')
        p.i(f's_cbranch_scc1 {Lok}')
        p.i(f's_sub_u32 {s(S_T+1)}, {s(S_T+1)}, 1'); p.i(f's_cbranch_scc1 {Lok}')
        p.i('s_sleep 2')
        p.i(f's_lshl_b32 {s(S_T)}, {s(S_J)}, 9'); p.i(f's_add_u32 {s(S_T)}, {s(S_T)}, {off}')
        p.i(f'buffer_load_dword v{d}, v{d+2}, {s(SRD_WS,4)}, {s(S_T)} offen sc1')
        p.i('s_waitcnt vmcnt(0)')
        p.i(f's_branch {Lsp}')
        p.label(Lok)
        p.i('s_barrier')

    def set_flag_s(self, soff_sreg, data_v=172):
        p = self.p
        p.i(f'v_mov_b32 v{data_v}, {s(S_NONCE)}')
        p.i(f'v_mov_b32 v{data_v+1}, 0')
        p.i('s_mov_b64 exec, 1')
        t = p.vm(f'buffer_store_dword v{data_v}, v{data_v+1}, {s(SRD_WS,4)}, {s(soff_sreg)} offen sc1')
        p.i('s_mov_b64 exec, -1')
        return t
    def set_board(self, off, tag):
        p = self.p
        p.wait_vm(tag)
        p.i('s_barrier')
        p.i(f's_add_u32 {s(S_T+4)}, {s(S_FSLOT)}, {off}')
        p.i(f's_cmp_eq_u32 {s(S_W)}, 0'); p.i(f's_cselect_b32 {s(S_T+4)}, {s(S_T+4)}, {OOB}')
        return self.set_flag_s(S_T+4)

    def dump_regs(self, regs, slot):
        p = self.p
        p.i(f's_lshl_b32 {s(S_T)}, s2, 2'); p.i(f's_add_u32 {s(S_T)}, {s(S_T)}, {s(S_W)}')
        p.i(f's_lshl_b32 {s(S_T)}, {s(S_T)}, 14'); p.i(f's_add_u32 {s(S_T)}, {s(S_T)}, {WS_DBG}')
        p.i(f'v_lshrrev_b32 v31, 2, {v(V_L16)}')
        for k, r in enumerate(regs):
            idx = slot + k
            if r.startswith('a'):
                p.i(f'v_accvgpr_read_b32 v30, {r}'); r = 'v30'
            p.i(f's_add_u32 {s(S_T+1)}, {s(S_T)}, {idx*256}')
            p.vm(f'buffer_store_dword {r}, v31, {s(SRD_WS,4)}, {s(S_T+1)} offen')
            p.wait_vm_all()

    def dump_lds(self, lds_off, nbytes):
        p = self.p
        p.barrier()
        p.i(f's_lshl_b32 {s(S_T)}, s2, 17'); p.i(f's_add_u32 {s(S_T)}, {s(S_T)}, {WS_DBG2}')
        p.i(f'v_lshlrev_b32 v31, 4, v0'); p.i(f'v_add_u32 v30, {lds_off}, v31')
        for k in range(0, nbytes, 4096):
            t = p.ds(f'ds_read_b128 v[24:27], v30'); p.wait_lg(t)
            p.vm(f'buffer_store_dwordx4 v[24:27], v31, {s(SRD_WS,4)}, {s(S_T)} offen')
            p.wait_vm_all()
            p.i(f'v_add_u32 v30, 4096, v30'); p.i(f's_add_u32 {s(S_T)}, {s(S_T)}, 4096')

    def stamp(self, name):
        if not self.cfg.get('prof'): return
        p = self.p
        n = len(self.stamps); self.stamps.append(name)
        p.wait_lg_all()
        p.i('s_memrealtime s[86:87]'); p.i('s_memtime s[88:89]'); p.i('s_waitcnt lgkmcnt(0)')
        p.i(f'v_writelane_b32 v31, s86, {n}'); p.i(f'v_writelane_b32 v175, s88, {n}')

    def end(self):
        p = self.p
        if self.cfg.get('prof'):
            p.i(f's_lshl_b32 s56, s2, 2'); p.i(f's_add_u32 s56, s56, {s(S_W)}'); p.i('s_lshl_b32 s56, s56, 9'); p.i(f's_add_u32 s56, s56, {WS_DBG}')
            p.i(f'v_lshrrev_b32 v30, 2, {v(V_L16)}')
            p.vm(f'buffer_store_dword v31, v30, {s(SRD_WS,4)}, s56 offen')
            p.vm(f'buffer_store_dword v175, v30, {s(SRD_WS,4)}, s56 offen offset:256')
            open('stamps.json', 'w').write(json.dumps(self.stamps))
        p.label('L_end')
        p.i('s_endpgm')

    def unit_params(self, t):
        p = self.p
        I = p.i
        def divmod18(idx, q, r):
            I(f's_mul_i32 s{q}, s{idx}, 3641'); I(f's_lshr_b32 s{q}, s{q}, 16')
            I(f's_mul_i32 s{r}, s{q}, 18'); I(f's_sub_u32 s{r}, s{idx}, s{r}')
        W, J, Ii = s(S_W), s(S_J), s(S_I)
        def g1(idx):
            divmod18(idx, 59, 60); I('s_lshl_b32 s60, s60, 5')
            I(f's_mul_i32 s65, {J}, 1152'); I('s_lshl_b32 s73, s59, 7'); I('s_add_u32 s65, s65, s73')
            I(f's_add_u32 s70, s{idx}, {U_G1}')
        def w2(idx):
            divmod18(idx, 59, 71)
            I('s_lshr_b32 s60, s71, 2'); I('s_lshl_b32 s60, s60, 7'); I('s_and_b32 s73, s71, 3'); I('s_lshl_b32 s73, s73, 4'); I('s_add_u32 s60, s60, s73')
            I('s_sub_u32 s73, s71, 16'); I('s_lshl_b32 s73, s73, 5'); I('s_add_u32 s73, s73, 512')
            I('s_cmp_lt_u32 s71, 16'); I('s_cselect_b32 s60, s60, s73'); I('s_cselect_b32 s61, 64, 16')
            I(f's_mul_i32 s73, {J}, 576'); I('s_add_u32 s60, s60, s73')
        def w2tail():
            I(f's_add_u32 s73, {J}, s59'); I('s_and_b32 s73, s73, 7')
            I('s_cmp_eq_u32 s59, 0'); I('s_cselect_b32 s73, 8, s73'); I('s_lshl_b32 s65, s73, 7')
            I('s_mul_i32 s70, s59, 21'); I('s_add_u32 s70, s70, s71'); I(f's_add_u32 s70, s70, {U_G2}')
        def plain():
            I('s_mov_b32 s66, 8'); I('s_mov_b32 s67, 0'); I('s_mov_b32 s68, 32'); I('s_mov_b32 s69, 64')
        if t == 0:
            I(f's_lshl_b32 s74, {W}, 5'); I(f's_add_u32 s74, s74, {Ii}')
            I(f's_sub_u32 s58, s74, {NQ}'); I(f's_cmp_lt_u32 s74, {NQ}'); I('s_cselect_b32 s58, s74, s58')
            divmod18(58, 59, 60); I('s_lshl_b32 s60, s60, 5')
            I('s_mov_b32 s61, 4'); I('s_mov_b32 s62, 8'); I('s_mov_b32 s64, 575')
            I(f's_mul_i32 s71, {J}, 144')
            I('s_mov_b32 s65, 1152'); I('s_mov_b32 s66, 8'); I('s_mov_b32 s67, 0'); I('s_mov_b32 s68, 32'); I('s_mov_b32 s69, 64')
            I('s_cmp_eq_u32 s59, 1'); I('s_cselect_b32 s65, 1280, s65'); I('s_cselect_b32 s66, 1, s66'); I(f's_cselect_b32 s67, {1152-128-16}, s67')
            I('s_cmp_eq_u32 s59, 2'); I(f's_cselect_b32 s65, {2304+112}, s65'); I('s_cselect_b32 s66, 2, s66'); I(f's_cselect_b32 s67, {(-(2304+112) - 32) & 0xffffffff}, s67')
            I('s_cmp_eq_u32 s59, 3'); I('s_mov_b32 s73, 96'); I('s_cselect_b32 s65, s73, s65'); I('s_cselect_b32 s68, 0, s68'); I('s_cselect_b32 s69, 32, s69')
            I('s_add_u32 s65, s65, s71')
            I(f's_mul_i32 s72, {J}, 1152'); I('s_lshl_b32 s73, s59, 7'); I('s_add_u32 s72, s72, s73')
            I(f's_cmp_lt_u32 s74, {NQ}')
            I('s_cselect_b32 s65, s65, s72'); I('s_cselect_b32 s66, s66, 8'); I('s_cselect_b32 s67, s67, 0')
            I('s_cselect_b32 s68, s68, 32'); I('s_cselect_b32 s69, s69, 64')
            I('s_mov_b32 s72, 9216'); I('s_cselect_b32 s63, 3456, s72')
            I(f's_cselect_b32 {s(SRD_SRC)}, s6, s12'); I(f's_cselect_b32 {s(SRD_SRC+1)}, s7, s13')
            I(f's_mov_b32 s72, {576*9216}'); I(f's_cselect_b32 {s(SRD_SRC+2)}, {576*3456}, s72')
            I(f's_mov_b32 {s(SRD_SRC+3)}, 0x20000')
            I('s_mov_b32 s70, s74')
            I('s_mov_b32 s72, 0')
        elif t == 1:
            I(f's_lshl_b32 s58, {W}, 5'); I(f's_add_u32 s58, s58, {Ii}'); I('s_add_u32 s58, s58, 56')
            g1(58); plain()
            I('s_mov_b32 s61, 4'); I('s_mov_b32 s62, 8'); I('s_mov_b32 s63, 9216'); I('s_mov_b32 s64, 575')
            self.srd(SRD_SRC, 12, 13, 576*9216)
            I(f's_cmp_ge_u32 s58, {NG1}'); I('s_cselect_b32 s72, 1, 0')
        elif t == 2:
            I(f's_lshl_b32 s58, {W}, 5'); I(f's_add_u32 s58, s58, {Ii}')
            w2(58); w2tail(); plain()
            I('s_mov_b32 s62, 4'); I('s_mov_b32 s63, 1152'); I('s_mov_b32 s64, 4607'); I('s_mov_b32 s72, 0')
            self.srd(SRD_SRC, 16, 17, 4608*1152)
        else:
            I(f's_lshl_b32 s58, {W}, 5'); I(f's_add_u32 s58, s58, {Ii}'); I('s_add_u32 s58, s58, 128')
            w2(58)
            I('s_mov_b32 s64, 4607')
            I('s_cmp_ge_u32 s58, 162'); I('s_cselect_b32 s72, 1, 0')
            I(f's_mul_i32 s74, {Ii}, 21846'); I('s_lshr_b32 s74, s74, 16'); I('s_mul_i32 s75, s74, 3'); I(f's_sub_u32 s75, {Ii}, s75')
            I(f's_mul_i32 s76, {J}, 72'); I('s_add_u32 s77, s76, 71'); I('s_lshl_b32 s73, s75, 5'); I('s_add_u32 s76, s76, s73')
            I('s_add_u32 s75, s75, 18')
            I(f's_cmp_ge_u32 {Ii}, 27'); I('s_cselect_b32 s73, 1, 0')
            I(f's_cmp_eq_u32 {W}, 2')
            I('s_cselect_b32 s59, s74, s59'); I('s_cselect_b32 s71, s75, s71'); I('s_cselect_b32 s60, s76, s60')
            I('s_cselect_b32 s64, s77, s64'); I('s_cselect_b32 s61, 16, s61'); I('s_cselect_b32 s72, s73, s72')
            I(f's_cselect_b32 {s(SRD_SRC)}, s8, s16'); I(f's_cselect_b32 {s(SRD_SRC+1)}, s9, s17')
            I(f's_mov_b32 s73, {4608*1152}'); I(f's_cselect_b32 {s(SRD_SRC+2)}, {576*1152}, s73')
            I(f's_mov_b32 {s(SRD_SRC+3)}, 0x20000')
            I('s_mov_b32 s62, 4'); I('s_mov_b32 s63, 1152')
            w2tail(); plain()
        I(f's_mul_i32 s73, {J}, {4*NU}'); I('s_add_u32 s70, s70, s73'); I('s_lshl_b32 s70, s70, 10')
        I('s_cmp_eq_u32 s72, 0'); I(f's_cselect_b32 s70, s70, {OOB}')
        I(f's_cselect_b32 {s(SRD_SRC+2)}, {s(SRD_SRC+2)}, 0')

    def unit_dma(self, t, regs=None):
        p = self.p
        p.i('v_mad_u32_u24 v10, v4, s61, v5')
        p.i('v_mad_u32_u24 v11, v7, s68, v6')
        p.i('v_mad_u32_u24 v11, v8, s69, v11')
        p.i('v_mov_b32 v12, s67')
        p.i('v_cmp_le_u32 vcc, s66, v9')
        p.i(f's_mul_i32 s72, {s(S_W)}, 12288')
        p.i('v_cndmask_b32 v12, 0, v12, vcc')
        p.i(f's_add_u32 s72, s72, {L_STG + (t % 3)*4096}')
        p.i('v_add3_u32 v11, v11, v12, s65')
        p.i('s_mov_b32 s73, s60')
        for d in range(4):
            p.i('v_add_u32 v12, s73, v10')
            p.i('v_min_u32 v12, s64, v12')
            p.i(f'v_mad_u32_u24 v{13+d}, v12, s63, v11')
            if d < 3: p.i('s_add_u32 s73, s73, s62')
        tag = None
        for d in range(4):
            if regs is not None:
                tag = p.vm(f'buffer_load_dwordx4 v[{regs+4*d}:{regs+4*d+3}], v{13+d}, {s(SRD_SRC,4)}, 0 offen')
                continue
            p.i('s_mov_b32 m0, s72')
            p.i('s_add_u32 s72, s72, 1024')
            tag = p.vm(f'buffer_load_dwordx4 v{13+d}, {s(SRD_SRC,4)}, 0 offen lds')
        return tag

    def unit_read(self, t, tag, dst, areg=17):
        p = self.p
        p.wait_vm(tag)
        tags = []
        for c in range(4):
            d = self.udst(dst, c)
            p.ds(f'ds_read_b64_tr_b16 v[{d}:{d+1}], v{areg} offset:{(t%3)*4096 + 32*c}')
            tags.append(p.ds(f'ds_read_b64_tr_b16 v[{d+2}:{d+3}], v{areg} offset:{(t%3)*4096 + 32*c + 512}'))
        return tags
    @staticmethod
    def udst(dst, c):
        if isinstance(dst, tuple): return dst[c//2] + 4*(c % 2)
        return dst + 4*c
    def unit_store_one(self, c, tags, dst, soff_s):
        p = self.p
        p.wait_lg(tags[c])
        if c: p.i(f's_add_u32 {s(soff_s)}, {s(soff_s)}, {NU*1024}')
        d = self.udst(dst, c)
        return p.vm(f'buffer_store_dwordx4 v[{d}:{d+3}], {v(V_L16)}, {s(SRD_WS,4)}, {s(soff_s)} offen sc1')

    def raw_dma(self, lds_base, vreg, k0=0, k1=18):
        p = self.p
        p.i(f's_lshl_b32 s72, {s(S_W)}, 10'); p.i(f's_add_u32 s72, s72, {lds_base + 4096*k0}')
        p.i(f's_mov_b32 s73, {32*3456*k0}')
        tag = None
        for k in range(k0, k1):
            p.i('s_mov_b32 m0, s72')
            p.i('s_add_u32 s72, s72, 4096')
            tag = p.vm(f'buffer_load_dwordx4 v{vreg}, {s(SRD_OUT,4)}, s73 offen lds')
            if k < k1-1: p.i(f's_add_u32 s73, s73, {32*3456}')
        return tag

    def prologue(self):
        p = self.p; I = p.i
        I('s_cmp_ge_u32 s2, 256'); I('s_cbranch_scc1 L_end')
        I('s_load_dwordx16 s[4:19], s[0:1], 0'); I('s_load_dwordx4 s[20:23], s[0:1], 64'); I('s_load_dwordx2 s[24:25], s[0:1], 80')
        if self.cfg.get('prof'):
            I('s_memrealtime s[90:91]'); I('s_memtime s[92:93]')
        I(f's_getpc_b64 {s(54,2)}')
        I('v_lshrrev_b32 v4, 6, v0'); I('v_and_b32 v5, 63, v0')
        I(f'v_readfirstlane_b32 {s(S_W)}, v4')
        I(f'v_lshlrev_b32 {v(V_L16)}, 4, v5'); I(f'v_and_b32 {v(V_N)}, 15, v5'); I(f'v_lshrrev_b32 {v(V_G)}, 4, v5')
        I(f's_and_b32 {s(S_J)}, s2, 7'); I(f's_lshr_b32 {s(S_I)}, s2, 3')
        I(f's_lshl_b32 s56, {s(S_I)}, 4'); I(f's_lshl_b32 s57, {s(S_W)}, 2'); I('s_add_u32 s56, s56, s57')
        I('v_add_u32 v20, s56, v5'); I('v_lshlrev_b32 v20, 7, v20')
        p.i('v_min_u32 v21, 0x7ffffff0, v20', note='CODEWARM')
        I('s_mov_b64 exec, 15')
        p.vm(f'global_load_dword v174, v21, {s(54,2)}')
        I('s_mov_b64 exec, -1')
        I(f's_lshl_b32 s56, {s(S_I)}, 6'); I(f's_lshl_b32 s57, {s(S_W)}, 4'); I('s_add_u32 s56, s56, s57')
        I('v_lshrrev_b32 v18, 2, v5'); I('v_and_b32 v19, 3, v5')
        I('v_add_u32 v24, s56, v18'); I('v_mul_u32_u24 v24, 1152, v24'); I('v_lshl_add_u32 v24, v19, 4, v24')
        I('v_lshlrev_b32 v20, 1, v19'); I('v_xor_b32 v20, v18, v20'); I('v_lshl_add_u32 v20, v19, 4, v20'); I('v_lshlrev_b32 v30, 4, v20')
        I('v_mov_b32 v29, v18')
        I('v_and_b32 v9, 7, v5'); I('v_lshrrev_b32 v10, 3, v5')
        I('v_lshrrev_b32 v4, 2, v10'); I('v_and_b32 v18, 3, v10')
        I('v_and_b32 v6, 1, v9'); I('v_lshlrev_b32 v6, 4, v6'); I('v_bfe_u32 v7, v9, 1, 1'); I('v_lshrrev_b32 v8, 2, v9')
        I('v_mov_b32 v5, v18')
        p.smem_wait()
        if self.cfg.get('prof'):
            self.stamps.append('start'); I('v_writelane_b32 v31, s90, 0'); I('v_writelane_b32 v175, s92, 0')
        tagU = {}
        self.unit_params(0); I('s_mov_b32 s94, s70'); tagU[0] = self.unit_dma(0)
        self.stamp('u0_issued')
        self.srd(SRD_X, 4, 5, 2048*1152)
        NH = self.cfg.get('xfirst', 9)
        xt = None
        for k in range(NH):
            xt = p.vm(f'buffer_load_dwordx4 v[{64+4*k}:{67+4*k}], v24, {s(SRD_X,4)}, 0 offen offset:{64*k}')
        self.srd(SRD_WS, 24, 25, self.ws_size)
        I(f's_lshl_b32 s56, {s(S_J)}, 13'); I(f's_mul_i32 s57, {s(S_I)}, 180'); I('s_add_u32 s56, s56, s57'); I(f's_add_u32 s56, s56, {WS_KVG}')
        I(f's_cmp_eq_u32 {s(S_W)}, 0'); I(f's_cselect_b32 s56, s56, {OOB}')
        I(f'v_lshrrev_b32 v18, 2, {v(V_L16)}'); I(f'v_mov_b32 v20, {OOB}'); I('v_cmp_gt_u32 vcc, 180, v18'); I('v_cndmask_b32 v18, v20, v18, vcc')
        I('v_mov_b32 v20, 0')
        p.vm(f'buffer_store_dword v20, v18, {s(SRD_WS,4)}, s56 offen sc1')
        I('v_mov_b32 v28, 0'); I(f's_mov_b32 s56, {WS_NONCE}')
        ntag = p.vm(f'buffer_load_dword v28, v28, {s(SRD_WS,4)}, s56 offen')
        I(f'v_lshrrev_b32 v17, 2, {v(V_N)}'); I(f'v_lshl_add_u32 v17, {v(V_G)}, 3, v17'); I('v_lshlrev_b32 v17, 7, v17')
        I(f'v_and_b32 v18, 3, {v(V_N)}'); I('v_lshl_add_u32 v17, v18, 3, v17')
        I(f's_mul_i32 s72, {s(S_W)}, 12288'); I(f's_add_u32 s72, s72, {L_STG}'); I('v_add_u32 v17, s72, v17')
        I(f's_lshl_b32 s56, {s(S_I)}, 2')
        I(f's_lshl_b32 s57, {s(S_J)}, 9'); I(f's_add_u32 {s(S_FSLOT)}, s56, s57')
        tg0 = self.unit_read(0, tagU[0], 144)
        st0 = None
        for c in range(4): st0 = self.unit_store_one(c, tg0, 144, 94)
        self.stamp('u0_stored')
        for k in range(NH, 18):
            xt = p.vm(f'buffer_load_dwordx4 v[{64+4*k}:{67+4*k}], v24, {s(SRD_X,4)}, 0 offen offset:{64*k}')
        self.stamp('x_issued')
        p.wait_vm(ntag)
        I(f'v_readfirstlane_b32 {s(S_NONCE)}, v28')
        I(f's_mul_i32 {s(S_NONCE)}, {s(S_NONCE)}, 1664525'); I(f's_add_u32 {s(S_NONCE)}, {s(S_NONCE)}, 1013904223')
        self.set_board(WS_F0, st0)
        self.stamp('F0_set')
        self.tagU = tagU
        for t in (1, 2, 3): self.late_unit(t)
        self.b1_load()
        self.stamp('late_issued')
        I(f's_mov_b32 {s(S_ONES)}, 0x3f803f80')
        for k in range(4):
            I(f'v_mov_b32 v{136+k}, 0'); I(f'v_mov_b32 v{140+k}, 0')
        p.wait_vm(xt)
        self.stamp('x_landed')
        for k in range(72):
            I(f'v_dot2_f32_bf16 v{136+k%4}, v{64+k}, {s(S_ONES)}, v{136+k%4}')
            I(f'v_dot2_f32_bf16 v{140+k%4}, v{64+k}, v{64+k}, v{140+k%4}')
        I('v_add_f32 v136, v136, v137'); I('v_add_f32 v138, v138, v139'); I('v_add_f32 v140, v140, v141'); I('v_add_f32 v142, v142, v143')
        I('v_add_f32 v136, v136, v138'); I('v_add_f32 v140, v140, v142')
        for perm in ('[1,0,3,2]', '[2,3,0,1]'):
            I(f'v_add_f32_dpp v136, v136, v136 quad_perm:{perm} row_mask:0xf bank_mask:0xf')
            I(f'v_add_f32_dpp v140, v140, v140 quad_perm:{perm} row_mask:0xf bank_mask:0xf')
        inv = 1.0/576.0
        I(f'v_mul_f32 v136, {f2h(inv)}, v136'); I(f'v_mul_f32 v140, {f2h(inv)}, v140')
        I('v_fma_f32 v140, -v136, v136, v140'); I('v_max_f32 v140, 0, v140')
        I(f'v_add_f32 v141, {f2h(1e-5)}, v140'); I('v_rsq_f32 v141, v141')
        I('v_mul_f32 v142, v141, v141'); I('v_mul_f32 v142, v142, v140'); I(f'v_add_f32 v142, {f2h(1e-5)}, v142')
        I('v_rsq_f32 v143, v142'); I('v_mul_f32 v137, v142, v143'); I('v_mul_f32 v138, v141, v143')
        I('v_mov_b32 v139, v138'); I('v_mul_f32 v140, -v136, v138'); I('v_mov_b32 v141, v140')
        I('s_mov_b32 s56, 0xffff0000')
        I(f's_lshl_b32 s57, {s(S_W)}, 10'); I(f's_add_u32 s57, s57, {L_Y}')
        I('v_add_u32 v20, s57, v30'); I('v_add_u32 v21, 0x10000, v20')
        for k in range(72):
            t0 = 160 + 2*(k % 4)
            I(f'v_lshlrev_b32 v{t0}, 16, v{64+k}'); I(f'v_and_b32 v{t0+1}, s56, v{64+k}')
            I(f'v_pk_fma_f32 v[{t0}:{t0+1}], v[{t0}:{t0+1}], v[138:139], v[140:141]')
            I(f'v_cvt_pk_bf16_f32 v{64+k}, v{t0}, v{t0+1}')
            if k == 40: self.f0tag = self.board_issue(WS_F0, d=26)
            if k % 4 == 3:
                kk = k // 4
                if kk < 16: p.ds(f'ds_write_b128 v20, v[{64+4*kk}:{67+4*kk}] offset:{kk*4096}')
                else: p.ds(f'ds_write_b128 v21, v[{64+4*kk}:{67+4*kk}] offset:{(kk-16)*4096}')
        I(f's_lshl_b32 s56, {s(S_W)}, 6'); I(f's_add_u32 s56, s56, {L_TS}')
        I('v_lshlrev_b32 v20, 2, v29'); I('v_add_u32 v20, s56, v20')
        p.ds('ds_write_b32 v20, v137')
        self.stamp('ln_done')
        self.tagU = tagU
        self.st_unit = {}
        p.barrier()
        self.stamp('y_written')

    def late_unit(self, t):
        p = self.p
        self.unit_params(t); p.i(f's_mov_b32 s{94+t}, s70'); self.tagU[t] = self.unit_dma(t)
    def b1_load(self):
        p = self.p; I = p.i
        I(f's_mul_i32 s56, {s(S_J)}, 1152')
        I('s_add_u32 s48, s14, s56'); I('s_addc_u32 s49, s15, 0'); I('s_mov_b32 s50, 1152'); I('s_mov_b32 s51, 0x20000')
        I('v_lshlrev_b32 v24, 2, v0')
        p.vm(f'buffer_load_dword v22, v24, {s(SRD_B,4)}, 0 offen')
        self.tb1 = p.vm(f'buffer_load_dword v23, v24, {s(SRD_B,4)}, 0 offen offset:1024')
    def b1_table(self):
        p = self.p; I = p.i
        p.wait_vm(self.tb1)
        I('s_mov_b32 s56, 0xffff0000')
        I('v_lshlrev_b32 v8, 16, v22'); I('v_and_b32 v9, s56, v22'); I('v_lshlrev_b32 v10, 16, v23'); I('v_and_b32 v11, s56, v23')
        I('v_lshlrev_b32 v24, 3, v0'); I(f'v_add_u32 v25, {L_TB1}, v24')
        p.ds('ds_write_b64 v25, v[8:9]')
        I(f'v_add_u32 v25, {L_TB1+2048}, v24'); I(f'v_mov_b32 v24, {L_DUMMY}'); I('v_cmp_gt_u32 vcc, 32, v0'); I('v_cndmask_b32 v25, v24, v25, vcc')
        p.ds('ds_write_b64 v25, v[10:11]')

    def ring_init(self):
        p = self.p
        self.rtag = {}; self.rnext = 0; self.rslot = {}
        self.free_base = [RING + 4*k for k in range(R)]
        self.free_extra = [176 + 4*k for k in range(self.cfg.get('rx', 12))]
        p.i(f's_lshl_b32 {s(S_STR)}, {s(S_J)}, 2'); p.i(f's_add_u32 {s(S_STR)}, {s(S_STR)}, {s(S_W)}')
        p.i(f's_mul_i32 {s(S_STR)}, {s(S_STR)}, {NU*1024}')
    def slot(self, u): return self.rslot[u]
    def ring_can(self, u):
        if u >= NU: return False
        if u >= U_G1 + 56 and not self.f1_ok: return False
        if u >= U_G2 and not self.f2_ok: return False
        return True
    def ring_load(self):
        p = self.p; u = self.rnext
        if not self.ring_can(u): return False
        if u < U_G2 and self.free_extra: sl = self.free_extra.pop(0)
        elif self.free_base: sl = self.free_base.pop(0)
        else: return False
        if u % 4 == 0 and u > 0: p.i(f's_add_u32 {s(S_STR)}, {s(S_STR)}, 4096')
        self.rslot[u] = sl
        self.rtag[u] = p.vm(f'buffer_load_dwordx4 {v(sl,4)}, {v(V_L16)}, {s(SRD_WS,4)}, {s(S_STR)} offen offset:{(u%4)*1024} sc1')
        self.rnext += 1
        return True
    def ring_free(self, u):
        sl = self.rslot[u]
        (self.free_extra if sl >= 176 else self.free_base).append(sl)
    def ring_post(self, u, maxn=2):
        self.ring_free(u)
        for _ in range(maxn):
            if not self.ring_load(): break
    def ring_state(self): return (dict(self.rtag), dict(self.rslot), list(self.free_base), list(self.free_extra), self.rnext)
    def ring_restore(self, st):
        self.rtag, self.rslot, self.free_base, self.free_extra, self.rnext = dict(st[0]), dict(st[1]), list(st[2]), list(st[3]), st[4]

    def run_pass(self, nk, mf, pre, post, fillers=(), start=2, tail=0, nper=4):
        p = self.p
        n = nk*nper
        total = sum(c for c, _ in fillers)
        fi = 0; acc = 0.0; m = 0
        span = max(1, n - tail - start)
        for k in range(nk):
            pre(k)
            row = mf(k)
            for q, txt in enumerate(row):
                p.i(txt); m += 1
                if q == len(row) - 1: post(k)
                if m > start:
                    tgt = total * min(1.0, (m - start) / span)
                    while fi < len(fillers) and acc + fillers[fi][0]*0.5 <= tgt:
                        fillers[fi][1](); acc += fillers[fi][0]; fi += 1
        while fi < len(fillers):
            fillers[fi][1](); fi += 1
    def stream_pass(self, u0, nk, mf, fillers=(), start=2, tail=0, nper=4):
        self.run_pass(nk, mf, lambda k: self.p.wait_vm(self.rtag[u0+k]), lambda k: self.ring_post(u0+k), fillers, start, tail, nper)

    SV = 152
    @staticmethod
    def merge_fill(A, B):
        ta = sum(c for c, _ in A); tb = sum(c for c, _ in B)
        out = []; ia = ib = 0; ca = cb = 0.0
        while ia < len(A) or ib < len(B):
            if ib >= len(B) or (ia < len(A) and (ca + 1e-9) / max(ta, 1) <= (cb + B[ib][0]*0.5) / max(tb, 1)):
                out.append(A[ia]); ca += A[ia][0]; ia += 1
            else:
                out.append(B[ib]); cb += B[ib][0]; ib += 1
        return out
    def F(self, lst, txt, c=4): lst.append((c, lambda t=txt: self.p.i(t)))
    def phi_fill(self, acc, tgs, tile_code):
        L = []; p = self.p
        def consts():
            tile_code()
            p.i('s_lshl_b32 s57, s56, 4'); p.i(f'v_add_u32 v27, s57, {v(V_N)}'); p.i('v_cmp_gt_u32 vcc, 72, v27')
            p.i(f'v_mov_b32 v28, {f2h(1e-6)}'); p.i('v_mov_b32 v29, 0xff7fffff'); p.i(f'v_mov_b32 v27, {f2h(1e-6)}')
            p.i('v_cndmask_b32 v28, 0, v28, vcc'); p.i('v_cndmask_b32 v29, v29, v27, vcc'); p.i('v_cndmask_b32 v30, 0, 1.0, vcc')
        L.append((40, consts))
        for k, tg in enumerate(tgs):
            r = [acc + 4*k + i for i in range(4)]
            for i in range(4): self.F(L, f'v_fma_f32 v{r[i]}, v{r[i]}, v{self.SV+4*tg+i}, v28')
            for i in range(4): self.F(L, f'v_mul_f32 v{168+i}, {s(S_LOG2E)}, v{r[i]}')
            for i in range(4): self.F(L, f'v_exp_f32 v{168+i}, v{168+i}', 8)
            for i in range(4): self.F(L, f'v_max_f32 v{r[i]}, v{r[i]}, v29')
            for i in range(4): self.F(L, f'v_min_f32 v{168+i}, v{168+i}, v30')
            for i in range(4): self.F(L, f'v_add_f32 v{r[i]}, v{r[i]}, v{168+i}')
        return L
    def kv_fill(self, acc, tile_code):
        L = []; p = self.p
        def addr():
            tile_code(); p.i('s_lshl_b32 s57, s56, 11'); p.i(f's_add_u32 s57, s57, {L_KVF}'); p.i(f'v_add_u32 v27, s57, {v(V_L16)}')
        L.append((12, addr))
        for kap in range(2):
            for h in range(2):
                b = acc + 4*(2*kap+h)
                self.F(L, f'v_cvt_pk_bf16_f32 v{4+2*h}, v{b}, v{b+1}')
                self.F(L, f'v_cvt_pk_bf16_f32 v{5+2*h}, v{b+2}, v{b+3}')
            L.append((8, lambda kap=kap: p.ds(f'ds_write_b128 v27, v[4:7] offset:{kap*1024}')))
        return L
    def q_fill(self, acc, ntg, qt_code, tg_s=None):
        L = []; p = self.p
        def addr():
            qt_code(); p.i('s_lshl_b32 s57, s56, 5'); p.i(f's_add_u32 s57, s57, {L_PQ}')
            if tg_s is not None:
                p.i(f's_mul_i32 s58, {s(tg_s)}, {16*PQ_RS}'); p.i('s_add_u32 s57, s57, s58')
            p.i(f'v_mul_u32_u24 v27, {4*PQ_RS}, {v(V_G)}'); p.i(f'v_lshl_add_u32 v27, {v(V_N)}, 1, v27'); p.i('v_add_u32 v27, s57, v27')
        L.append((24, addr))
        for k in range(ntg):
            b = acc + 4*k; base = 16*k*PQ_RS
            self.F(L, f'v_cvt_pk_bf16_f32 v4, v{b}, v{b+1}'); self.F(L, f'v_cvt_pk_bf16_f32 v5, v{b+2}, v{b+3}')
            L.append((6, lambda base=base: p.ds(f'ds_write_b16 v27, v4 offset:{base}')))
            L.append((6, lambda base=base: p.ds(f'ds_write_b16_d16_hi v27, v4 offset:{base+PQ_RS}')))
            L.append((6, lambda base=base: p.ds(f'ds_write_b16 v27, v5 offset:{base+2*PQ_RS}')))
            L.append((6, lambda base=base: p.ds(f'ds_write_b16_d16_hi v27, v5 offset:{base+3*PQ_RS}')))
        return L

    def unit_out_fill(self, t, tiles=(0, 1, 2, 3), tmp=(144, 148), areg=17):
        L = []; p = self.p
        for c in tiles:
            d = tmp[c % 2]; st = {}
            def rd(c=c, d=d, st=st):
                p.wait_vm(self.tagU[t])
                p.ds(f'ds_read_b64_tr_b16 v[{d}:{d+1}], v{areg} offset:{(t%3)*4096 + 32*c}')
                st['t'] = p.ds(f'ds_read_b64_tr_b16 v[{d+2}:{d+3}], v{areg} offset:{(t%3)*4096 + 32*c + 512}')
            def sto(c=c, d=d, st=st):
                p.wait_lg(st['t'])
                p.i(f's_add_u32 s57, s{94+t}, {c*NU*1024}') if c else p.i(f's_mov_b32 s57, s{94+t}')
                self.st_unit[t] = p.vm(f'buffer_store_dwordx4 v[{d}:{d+3}], {v(V_L16)}, {s(SRD_WS,4)}, s57 offen sc1')
            L.append((16, rd)); L.append((40, sto))
        return L

    def qkv(self):
        p = self.p; I = p.i
        I(f's_mov_b32 {s(S_LOG2E)}, {f2h(1.4426950408889634)}')
        I(f'v_lshlrev_b32 v20, 4, {v(V_G)}'); I(f'v_add_u32 v20, {L_TS}, v20')
        for tg in range(4): p.ds(f'ds_read_b128 v[{self.SV+4*tg}:{self.SV+4*tg+3}], v20 offset:{64*tg}')
        I(f'v_lshlrev_b32 v20, 1, {v(V_G)}'); I(f'v_xor_b32 v20, {v(V_N)}, v20'); I(f'v_lshl_add_u32 v20, {v(V_G)}, 4, v20')
        I('v_lshlrev_b32 v20, 4, v20'); I(f'v_add_u32 v20, {L_Y}, v20'); I('v_add_u32 v21, 0x10000, v20')
        ytag = {}
        def yrd(k):
            if k >= 18: return
            for tg in range(4):
                off = (k*4+tg)*1024
                if off < 65536: ytag[k] = p.ds(f'ds_read_b128 {yreg(k,tg)}, v20 offset:{off}')
                else: ytag[k] = p.ds(f'ds_read_b128 {yreg(k,tg)}, v21 offset:{off-65536}')
        yrd(0); yrd(1); yrd(2)
        self.board_check(self.f0tag, WS_F0, d=26)
        self.stamp('F0_seen')
        self.ring_init()
        self.f1_ok = False; self.f2_ok = False
        for _ in range(self.cfg.get('p0', 12)): self.ring_load()
        def mfN(u0, acc, tgs):
            return lambda k: [f'{MF} {v(acc+4*q,4)}, {yreg(k,tg)}, {v(self.slot(u0+k),4)}, ' + ('0' if k == 0 else v(acc+4*q,4)) for q, tg in enumerate(tgs)]
        def pre0(k):
            yrd(k+3); p.wait_lg(ytag[k]); p.wait_vm(self.rtag[k])
        self.run_pass(18, mfN(0, ACC[0], [0,1,2,3]), pre0, lambda k: self.ring_post(k, 3), self.unit_out_fill(1), start=24, tail=4)
        self.stamp('pass0')
        p.barrier()
        t0c = lambda: I(f's_mov_b32 s56, {s(S_W)}')
        Fl = self.phi_fill(ACC[0], [0,1,2,3], t0c) + self.kv_fill(ACC[0], t0c)
        self.stream_pass(18, 18, mfN(18, ACC[1], [0,1,2,3]), Fl, start=3, tail=2)
        self.stamp('pass1')
        Z = []
        def zfill():
            I('v_mul_u32_u24 v27, 21846, v0'); I('v_lshrrev_b32 v27, 16, v27'); I('v_mul_u32_u24 v26, 3, v27'); I('v_sub_u32 v26, v0, v26')
            I(f'v_mul_u32_u24 v27, {PQ_RS}, v27'); I('v_lshl_add_u32 v27, v26, 4, v27'); I(f'v_add_u32 v27, {L_PQ+160}, v27')
            I(f'v_mov_b32 v26, {L_DUMMY}'); I('v_cmp_gt_u32 vcc, 192, v0'); I('v_cndmask_b32 v27, v26, v27, vcc')
            for k in range(4): I(f'v_mov_b32 v{8+k}, 0')
            p.ds('ds_write_b128 v27, v[8:11]')
            I('v_lshlrev_b32 v27, 4, v0'); I(f'v_add_u32 v27, {L_BD}, v27')
            for k in range(8): p.ds(f'ds_write_b128 v27, v[8:11] offset:{4096*k}')
        Z.append((120, zfill))
        t1c = lambda: I(f's_add_u32 s56, {s(S_W)}, 4')
        Fl = self.phi_fill(ACC[1], [0,1,2,3], t1c) + self.kv_fill(ACC[1], t1c) + Z
        Fl = self.merge_fill(Fl, self.unit_out_fill(3))
        self.stream_pass(36, 18, mfN(36, ACC[0], [0,1,2,3]), Fl, start=3, tail=2)
        self.set_board(WS_F1, self.st_unit[1])
        self.stamp('pass2')
        def t2c(): I(f's_cmp_eq_u32 {s(S_W)}, 0'); I('s_cselect_b32 s56, 8, 0')
        def ep2():
            La, Lb = p.newlabel('Lp2'), p.newlabel('Lp2')
            p.wait_lg_all(); st0 = p.state()
            I(f's_cmp_eq_u32 {s(S_W)}, 0'); I(f's_cbranch_scc0 {La}')
            for c, f in self.kv_fill(ACC[0], lambda: I('s_mov_b32 s56, 8')): f()
            p.wait_lg_all(); I(f's_branch {Lb}')
            p.label(La); p.set_state(st0)
            for c, f in self.q_fill(ACC[0], 4, lambda: I(f's_sub_u32 s56, {s(S_W)}, 1')): f()
            p.wait_lg_all(); p.label(Lb)
        La, Lb = p.newlabel('Lp3'), p.newlabel('Lp3')
        I(f's_and_b32 s58, {s(S_W)}, 1')
        st0 = p.state(); rs = self.ring_state()
        I('s_cmp_eq_u32 s58, 0'); I(f's_cbranch_scc0 {La}')
        self.stream_pass(54, 18, mfN(54, ACC[1], [0,1]), self.phi_fill(ACC[0], [0,1,2,3], t2c), start=2, tail=1, nper=2)
        I(f's_branch {Lb}')
        st1 = p.state()
        p.label(La); p.set_state(st0); self.ring_restore(rs)
        self.stream_pass(54, 18, mfN(54, ACC[1], [2,3]), self.phi_fill(ACC[0], [0,1,2,3], t2c), start=2, tail=1, nper=2)
        assert p.state() == st1
        p.label(Lb)
        ep2()
        self.stamp('pass3')
        La, Lb = p.newlabel('Lp4'), p.newlabel('Lp4')
        I(f's_and_b32 s58, {s(S_W)}, 1'); I('s_cmp_eq_u32 s58, 0'); I(f's_cbranch_scc1 {La}')
        for r in range(8): I(f'v_mov_b32 v{self.SV+r}, v{self.SV+8+r}')
        p.label(La)
        for c, f in self.phi_fill(ACC[1], [0,1], lambda: I('s_mov_b32 s56, 0')): f()
        def qt3(): I(f's_lshr_b32 s56, {s(S_W)}, 1'); I('s_add_u32 s56, s56, 3'); I(f's_and_b32 s59, {s(S_W)}, 1'); I('s_lshl_b32 s59, s59, 1')
        for c, f in self.q_fill(ACC[1], 2, qt3, tg_s=59): f()
        p.barrier()
        I(f's_lshl_b32 s56, {s(S_W)}, 11'); I(f's_add_u32 s56, s56, {L_KVF}'); I(f'v_add_u32 v27, s56, {v(V_L16)}')
        A_, B_ = 152, 32
        for al in range(2):
            for kap in range(2): p.ds(f'ds_read_b128 v[{A_+8*al+4*kap}:{A_+8*al+4*kap+3}], v27 offset:{al*2048+kap*1024}')
        for be in range(2):
            for kap in range(2): p.ds(f'ds_read_b128 v[{B_+8*be+4*kap}:{B_+8*be+4*kap+3}], v27 offset:{(4+be)*2048+kap*1024}')
        for k in range(4): I(f'v_mov_b32 v{24+k}, {s(S_ONES)}')
        p.wait_lg_all()
        self.KD = lambda al, be: 48 + 4*(2*al+be)
        self.KZ = lambda al: 4 + 4*al
        for kap in range(2):
            for al in range(2):
                for be in range(2):
                    d = self.KD(al, be); I(f'{MF} {v(d,4)}, {v(A_+8*al+4*kap,4)}, {v(B_+8*be+4*kap,4)}, ' + ('0' if kap == 0 else v(d,4)))
                d = self.KZ(al); I(f'{MF} {v(d,4)}, {v(A_+8*al+4*kap,4)}, v[24:27], ' + ('0' if kap == 0 else v(d,4)))
        self.stamp('kv_mfma')

    def kv_scatter_fill(self):
        p = self.p; L = []; I = p.i
        def head():
            I(f's_mul_i32 s56, {s(S_W)}, {18*20*4}'); I(f's_add_u32 s60, s56, {L_KVL}'); I(f's_lshl_b32 s57, {s(S_W)}, 1')
            I(f'v_lshlrev_b32 v20, 2, {v(V_G)}'); I('v_subrev_u32 v20, s57, v20'); I(f'v_subrev_u32 v21, s57, {v(V_N)}')
            I(f'v_mov_b32 v22, {L_DUMMY}'); I(f'v_cmp_eq_u32 s[62:63], 0, {v(V_N)}')
        L.append((32, head))
        for al in range(2):
            for i in range(4):
                def row(al=al, i=i):
                    I(f'v_add_u32 v23, {16*al+i}, v20'); I('v_cmp_gt_u32 s[64:65], 18, v23'); I('v_mul_u32_u24 v23, 80, v23'); I('v_add_u32 v23, s60, v23')
                L.append((16, row))
                for be in range(2):
                    def one(al=al, i=i, be=be):
                        I(f'v_add_u32 v24, {(16*be-8) & 0xffffffff}, v21'); I('v_cmp_gt_u32 vcc, 18, v24'); I('s_and_b64 vcc, vcc, s[64:65]')
                        I('v_lshl_add_u32 v24, v24, 2, v23'); I('v_cndmask_b32 v24, v22, v24, vcc')
                        p.ds(f'ds_write_b32 v24, v{self.KD(al,be)+i}')
                    L.append((24, one))
                def zz(al=al, i=i):
                    I('s_and_b64 vcc, s[62:63], s[64:65]'); I('v_add_u32 v24, 72, v23'); I('v_cndmask_b32 v24, v22, v24, vcc')
                    p.ds(f'ds_write_b32 v24, v{self.KZ(al)+i}')
                L.append((16, zz))
        return L
    def att_addr_fill(self):
        p = self.p; L = []; I = p.i
        for m in range(6):
            def f(m=m):
                I(f'v_add_u32 v20, {256*m}, v0'); I('v_mul_u32_u24 v21, 3277, v20'); I('v_lshrrev_b32 v21, 16, v21')
                I('v_mul_u32_u24 v22, 20, v21'); I('v_sub_u32 v22, v20, v22')
                I('v_mul_u32_u24 v23, 3641, v21'); I('v_lshrrev_b32 v23, 16, v23'); I('v_mad_u32_u24 v23, v23, 18, v22')
                I(f'v_mul_u32_u24 v23, {BD_RS}, v23'); I('v_lshl_add_u32 v23, v21, 1, v23'); I(f'v_add_u32 v23, {L_BD}, v23')
                I('v_cmp_gt_u32 vcc, 18, v22'); I('s_mov_b32 s62, 72'); I('v_cmp_gt_u32 s[60:61], s62, v21'); I('s_and_b64 vcc, vcc, s[60:61]')
                I(f'v_mov_b32 v24, {L_DUM2}'); I('v_cndmask_b32 v23, v24, v23, vcc')
                I(f'v_lshl_or_b32 v{25+m}, v21, 20, v23')
            L.append((72, f))
        return L
    def kv_atomics(self):
        p = self.p; I = p.i
        p.barrier()
        I(f's_lshl_b32 s56, {s(S_J)}, 13'); I(f's_add_u32 s56, s56, {WS_KVG}')
        I('s_add_u32 s48, s24, s56'); I('s_addc_u32 s49, s25, 0'); I('s_mov_b32 s50, 5760'); I('s_mov_b32 s51, 0x20000')
        I('v_lshlrev_b32 v20, 2, v0'); I(f'v_add_u32 v21, {L_KVL}, v20')
        tg_ = [p.ds(f'ds_read_b32 v{4+m}, v21 offset:{m*1024}') for m in range(6)]
        for m in range(6):
            p.wait_lg(tg_[m])
            if m == 4: I('v_add_u32 v20, 4096, v20')
            self.atom_tag = p.vm(f'buffer_atomic_add_f32 v{4+m}, v20, {s(SRD_B,4)}, 0 offen offset:{(m%4)*1024}')

    def gelu_fillers(self, prev, pidx):
        p = self.p; L = []
        half = pidx % 2; HPK = 152
        for tg in range(4):
            t = 4 + 4*(tg % 2); x = prev + 4*tg
            for i in range(4): self.F(L, f'v_mul_f32 v{t+i}, v{x+i}, v{x+i}')
            for i in range(4): self.F(L, f'v_fma_f32 v{t+i}, v{t+i}, {s(S_C1)}, v16')
            for i in range(4): self.F(L, f'v_mul_f32 v{t+i}, v{t+i}, v{x+i}')
            for i in range(4): self.F(L, f'v_exp_f32 v{t+i}, v{t+i}', 8)
            for i in range(4): self.F(L, f'v_add_f32 v{t+i}, 1.0, v{t+i}')
            for i in range(4): self.F(L, f'v_rcp_f32 v{t+i}, v{t+i}', 8)
            for i in range(4): self.F(L, f'v_mul_f32 v{t+i}, v{t+i}, v{x+i}')
            h = HPK + 4*tg + 2*half
            self.F(L, f'v_cvt_pk_bf16_f32 v{h}, v{t}, v{t+1}'); self.F(L, f'v_cvt_pk_bf16_f32 v{h+1}, v{t+2}, v{t+3}')
            if pidx == 8: L.append((8, lambda tg=tg, h=h: p.ds(f'ds_write_b64 v19, v[{h}:{h+1}] offset:{tg*1024}')))
            elif half == 1: L.append((8, lambda tg=tg: p.ds(f'ds_write_b128 v18, v[{HPK+4*tg}:{HPK+4*tg+3}] offset:{(pidx//2)*16384 + tg*1024}')))
        return L

    def gemm1(self):
        p = self.p; I = p.i
        c0 = 2*0.7978845608028654*1.4426950408889634
        I(f's_mov_b32 {s(S_C1)}, {f2h(-c0*0.044715)}'); I(f'v_mov_b32 v16, {f2h(-c0)}')
        I(f's_lshl_b32 s56, {s(S_W)}, 6'); I(f's_add_u32 s56, s56, {L_TB1}')
        I(f'v_lshlrev_b32 v17, 4, {v(V_G)}'); I('v_add_u32 v17, s56, v17')
        I(f's_lshl_b32 s56, {s(S_W)}, 12'); I(f's_add_u32 s56, s56, {L_HF}'); I(f'v_add_u32 v18, s56, {v(V_L16)}')
        I(f's_lshr_b32 s56, {s(S_W)}, 1'); I('s_lshl_b32 s56, s56, 12'); I(f's_and_b32 s57, {s(S_W)}, 1'); I('s_lshl_b32 s57, s57, 3')
        I('s_add_u32 s56, s56, s57'); I(f's_add_u32 s56, s56, {L_HF + 16*4096}'); I(f'v_add_u32 v19, s56, {v(V_L16)}')
        BIAS = [144, 148]
        btag = p.ds(f'ds_read_b128 v[{BIAS[0]}:{BIAS[0]+3}], v17')
        for ps in range(9):
            acc = ACC[ps % 2]; u0 = U_G1 + 18*ps
            F = []; nb = {}
            if ps < 8:
                F.append((4, lambda ps=ps: nb.__setitem__('t', p.ds(f'ds_read_b128 v[{BIAS[(ps+1)%2]}:{BIAS[(ps+1)%2]+3}], v17 offset:{256*(ps+1)}'))))
            if ps == 0:
                F += self.kv_scatter_fill() + self.att_addr_fill()
            if ps > 0: F += self.gelu_fillers(ACC[(ps-1) % 2], ps-1)
            if ps == 0:
                F.insert(1, (8, lambda: setattr(self, 'f1tag', self.board_issue(WS_F1))))
                F.append((20, lambda: (self.board_check(self.f1tag, WS_F1), setattr(self, 'f1_ok', True))))
            if ps == 6: F.append((8, lambda: setattr(self, 'f2tag', self.board_issue(WS_F2))))
            if ps == 7:
                F.insert(1, (20, lambda: (self.board_check(self.f2tag, WS_F2), setattr(self, 'f2_ok', True))))
                F.append((8, lambda: setattr(self, 'fatag', self.board_issue(WS_FA))))
            p.wait_lg(btag)
            def mf(k, acc=acc, u0=u0, ps=ps):
                return [f'{MF} {v(acc+4*tg,4)}, {v(self.slot(u0+k),4)}, {yreg(k,tg)}, ' + (v(BIAS[ps%2],4) if k == 0 else v(acc+4*tg,4)) for tg in range(4)]
            self.stream_pass(u0, 18, mf, F, start=3, tail=2)
            btag = nb.get('t')
            if ps in (0, 1, 2, 5, 8): self.stamp(f'g1_p{ps}')
            if ps == 0:
                self.kv_atomics()
            if ps == 2:
                self.set_board(WS_F2, self.st_unit[3])
                self.set_board(WS_FA, self.atom_tag)
        for c, f in self.gelu_fillers(ACC[0], 8): f()

    def attention(self):
        p = self.p; I = p.i
        self.board_check(self.fatag, WS_FA)
        self.stamp('FA_seen')
        I(f's_lshl_b32 s56, {s(S_J)}, 13'); I(f's_add_u32 s56, s56, {WS_KVG}')
        I('s_add_u32 s48, s24, s56'); I('s_addc_u32 s49, s25, 0'); I('s_mov_b32 s50, 5760'); I('s_mov_b32 s51, 0x20000')
        I('v_lshlrev_b32 v20, 2, v0'); I('v_add_u32 v21, 4096, v20')
        tags = []
        for m in range(6):
            p.vm(f'buffer_load_dword v{144+2*m}, v{20 if m < 4 else 21}, {s(SRD_B,4)}, 0 offen offset:{(m%4)*1024} sc1')
            I(f'v_lshrrev_b32 v22, 20, v{25+m}'); I('v_mul_u32_u24 v22, 80, v22')
            tags.append(p.vm(f'buffer_load_dword v{145+2*m}, v22, {s(SRD_B,4)}, 0 offen offset:72 sc1'))
            I(f'v_and_b32 v{25+m}, 0x3ffff, v{25+m}')
        for m in range(6):
            p.wait_vm(tags[m])
            I(f'v_cvt_pk_bf16_f32 v{144+2*m}, v{144+2*m}, v{145+2*m}')
            p.ds(f'ds_write_b16 v{25+m}, v{144+2*m}')
            p.ds(f'ds_write_b16_d16_hi v{25+m}, v{144+2*m} offset:{L_ZD-L_BD}')
        p.barrier()
        I(f's_mul_i32 s56, {s(S_W)}, {16*PQ_RS}'); I(f's_add_u32 s56, s56, {L_PQ}')
        I(f'v_mul_u32_u24 v20, {PQ_RS}, {v(V_N)}'); I(f'v_lshl_add_u32 v20, {v(V_G)}, 4, v20'); I('v_add_u32 v20, s56, v20')
        for k in range(3): p.ds(f'ds_read_b128 {a(72+4*k,4)}, v20 offset:{64*k}')
        I(f'v_mul_u32_u24 v20, {BD_RS}, {v(V_N)}'); I(f'v_lshl_add_u32 v20, {v(V_G)}, 4, v20'); I(f'v_add_u32 v20, {L_BD}, v20')
        pairs = [(0,0),(1,0),(1,1),(2,0),(2,1),(3,1),(3,2),(4,1),(4,2)]
        for idx, (t, k) in enumerate(pairs):
            p.ds(f'ds_read_b128 {a(8*idx,4)}, v20 offset:{16*t*BD_RS + 64*k}')
            p.ds(f'ds_read_b128 {a(8*idx+4,4)}, v20 offset:{L_ZD - L_BD + 16*t*BD_RS + 64*k}')
        p.wait_lg_all()
        NUM, DEN = 32, 144
        first = set()
        for idx, (t, k) in enumerate(pairs):
            c1 = '0' if t not in first else v(NUM+4*t,4); c2 = '0' if t not in first else v(DEN+4*t,4)
            I(f'{MF} {v(NUM+4*t,4)}, {a(8*idx,4)}, {a(72+4*k,4)}, {c1}')
            I(f'{MF} {v(DEN+4*t,4)}, {a(8*idx+4,4)}, {a(72+4*k,4)}, {c2}')
            first.add(t)
        I(f's_mov_b32 s56, {f2h(1e-6)}')
        for t in range(5):
            for i in range(4): I(f'v_add_f32 v{DEN+4*t+i}, s56, v{DEN+4*t+i}')
        for t in range(5):
            for i in range(4): I(f'v_rcp_f32 v{DEN+4*t+i}, v{DEN+4*t+i}')
        for t in range(5):
            for i in range(4): I(f'v_mul_f32 v{NUM+4*t+i}, v{NUM+4*t+i}, v{DEN+4*t+i}')
        O = 4
        for t in range(5):
            I(f'v_cvt_pk_bf16_f32 v{O+2*t}, v{NUM+4*t}, v{NUM+4*t+1}'); I(f'v_cvt_pk_bf16_f32 v{O+2*t+1}, v{NUM+4*t+2}, v{NUM+4*t+3}')
        I(f'v_mov_b32 v{O+10}, 0'); I(f'v_mov_b32 v{O+11}, 0')
        I(f's_lshl_b32 s56, {s(S_W)}, 10'); I(f's_add_u32 s56, s56, {L_OF}'); I(f'v_add_u32 v20, s56, {v(V_L16)}')
        for k in range(3): p.ds(f'ds_write_b128 v20, v[{O+4*k}:{O+4*k+3}] offset:{k*4096}')
        p.barrier()

    def gemm2(self):
        p = self.p; I = p.i
        I(f'v_add_u32 v20, {L_HF}, {v(V_L16)}'); I('v_add_u32 v21, 0x10000, v20')
        for f in range(84):
            off = f*1024
            if off < 65536: p.ds(f'ds_read_b128 {breg(f)}, v20 offset:{off}')
            else: p.ds(f'ds_read_b128 {breg(f)}, v21 offset:{off-65536}')
            if f % 12 == 11: p.wait_lg(p.lg_issued - 4)
        I(f's_lshl_b32 s74, {s(S_I)}, 6'); I(f's_add_u32 s74, s74, {s(S_J)}'); I('s_lshl_b32 s74, s74, 2'); I(f's_add_u32 s74, s74, {s(S_W)}')
        I('s_lshl_b32 s74, s74, 11'); I(f's_add_u32 s74, s74, {WS_PX}')
        I(f's_lshl_b32 s75, {s(S_I)}, 6'); I(f's_add_u32 s75, s75, {s(S_J)}'); I('s_lshl_b32 s75, s75, 10'); I(f's_add_u32 s75, s75, {WS_PS}')
        I(f's_lshl_b32 s76, {s(S_I)}, 5'); I(f's_add_u32 s76, s76, {s(S_W)}'); I('s_lshl_b32 s76, s76, 3'); I(f's_add_u32 s76, s76, {s(S_J)}')
        I('s_lshl_b32 s76, s76, 7'); I(f's_add_u32 s76, s76, {WS_XF}')
        p.wait_lg_all()
        self.stamp('H_resident')
        KEEP = 152
        PKS = self.cfg.get('pks', {0: 144, 1: 4, 2: 12, 3: 144, 4: 4, 5: 12, 6: 144, 7: 144})
        events = self.cfg.get('events', {3: [0, 1, 2], 6: [3, 4, 5], 7: [6], 8: [7]})
        st_tags = {}; flagged = set()
        def pack(q):
            acc = ACC[q % 2]; L = []; PK = PKS[q]
            if q == 0:
                def keep():
                    La, Lb = p.newlabel('Lk'), p.newlabel('Lk')
                    I(f's_and_b32 s56, {s(S_J)}, 1'); I('s_cmp_eq_u32 s56, 0'); I(f's_cbranch_scc0 {La}')
                    for r in range(8): I(f'v_mov_b32 v{KEEP+r}, v{acc+r}')
                    I(f's_branch {Lb}'); p.label(La)
                    for r in range(8): I(f'v_mov_b32 v{KEEP+r}, v{acc+8+r}')
                    p.label(Lb)
                L.append((40, keep))
            for tg in range(4):
                self.F(L, f'v_cvt_pk_bf16_f32 v{PK+2*tg}, v{acc+4*tg}, v{acc+4*tg+1}')
                self.F(L, f'v_cvt_pk_bf16_f32 v{PK+2*tg+1}, v{acc+4*tg+2}, v{acc+4*tg+3}')
            return L
        def stores(q):
            PK = PKS[q]
            if q == 0:
                I(f's_lshl_b32 s56, {s(S_W)}, 14'); I('s_add_u32 s56, s56, s75')
                p.vm(f'buffer_store_dwordx4 v[{PK}:{PK+3}], {v(V_L16)}, {s(SRD_WS,4)}, s56 offen sc1')
                I('s_add_u32 s56, s56, 8192')
                st_tags[q] = p.vm(f'buffer_store_dwordx4 v[{PK+4}:{PK+7}], {v(V_L16)}, {s(SRD_WS,4)}, s56 offen sc1')
            else:
                I(f's_add_u32 s56, {s(S_J)}, {q}'); I('s_and_b32 s56, s56, 7'); I('s_lshl_b32 s56, s56, 16'); I('s_add_u32 s56, s56, s74')
                p.vm(f'buffer_store_dwordx4 v[{PK}:{PK+3}], {v(V_L16)}, {s(SRD_WS,4)}, s56 offen sc1')
                st_tags[q] = p.vm(f'buffer_store_dwordx4 v[{PK+4}:{PK+7}], {v(V_L16)}, {s(SRD_WS,4)}, s56 offen offset:1024 sc1')
        def flag(q):
            p.wait_vm(st_tags[q])
            I(f's_add_u32 s56, {s(S_J)}, {q}'); I('s_and_b32 s56, s56, 7'); I('s_lshl_b32 s56, s56, 12'); I('s_add_u32 s56, s56, s76')
            self.set_flag_s(56); flagged.add(q)
        for q in range(9):
            acc = ACC[q % 2]; u0 = U_G2 + 21*q
            F = pack(q-1) if q > 0 else []
            for qq in events.get(q, []): F.append((24, lambda qq=qq: stores(qq)))
            if q == 8: F.append((40, self.final_prefetch))
            def mf(k, acc=acc): return [f'{MF} {v(acc+4*tg,4)}, {v(self.slot(u0+k),4)}, {breg(k*4+tg)}, ' + ('0' if k == 0 else v(acc+4*tg,4)) for tg in range(4)]
            self.stream_pass(u0, 21, mf, F, start=3, tail=60)
            if q in (0, 1, 4, 7, 8): self.stamp(f'g2_q{q}')
            for qq in range(1, q):
                if qq in st_tags and qq not in flagged and st_tags[qq] <= p.vm_done: flag(qq)
        self.final(st_tags, flagged, flag, KEEP)

    def final_prefetch(self):
        p = self.p; I = p.i
        self.srd(SRD_OUT, 20, 21, 2048*1152)
        I('s_mov_b32 s48, s18'); I('s_mov_b32 s49, s19'); I('s_mov_b32 s50, 1152'); I('s_mov_b32 s51, 0x20000')
        I(f's_lshl_b32 s56, {s(S_I)}, 6'); I(f'v_add_u32 v20, s56, {v(V_N)}'); I('v_mul_u32_u24 v20, 1152, v20')
        I(f's_lshl_b32 s56, {s(S_J)}, 2'); I(f's_add_u32 s56, s56, {s(S_W)}'); I('s_lshl_b32 s56, s56, 5')
        I(f'v_lshlrev_b32 v21, 3, {v(V_G)}'); I('v_add_u32 v21, s56, v21'); I('v_add_u32 v22, v20, v21')
        I(f's_lshl_b32 s57, {s(S_W)}, 5'); I('s_add_u32 s57, s57, 1024')
        I(f'v_lshlrev_b32 v23, 3, {v(V_G)}'); I('v_add_u32 v23, s57, v23')
        I(f's_and_b32 s58, {s(S_J)}, 1'); I(f's_mul_i32 s58, s58, {32*1152}'); I('v_add3_u32 v24, v20, v23, s58')
        I(f's_lshr_b32 s59, {s(S_J)}, 1'); I(f's_cmp_eq_u32 s59, {s(S_W)}'); I(f's_cselect_b32 s77, 0, {OOB}')
        X = 4
        for tg in range(4):
            I(f's_mov_b32 s60, {18432*tg}')
            p.vm(f'buffer_load_dwordx2 v[{X+2*tg}:{X+2*tg+1}], v22, {s(SRD_X,4)}, s60 offen')
        for tg in range(2):
            I(f's_add_u32 s60, s77, {18432*tg}')
            p.vm(f'buffer_load_dwordx2 v[{X+8+2*tg}:{X+9+2*tg}], v24, {s(SRD_X,4)}, s60 offen')
        p.vm(f'buffer_load_dwordx2 v[16:17], v21, {s(SRD_B,4)}, 0 offen')
        self.xt = p.vm(f'buffer_load_dwordx2 v[18:19], v23, {s(SRD_B,4)}, 0 offen')

    def final(self, st_tags, flagged, flag, KEEP):
        p = self.p; I = p.i
        acc = ACC[0]; X = 4
        for q in range(1, 8):
            if q not in flagged: flag(q)
        self.stamp('flags_out')
        I(f's_lshl_b32 s56, {s(S_I)}, 3'); I(f's_add_u32 s56, s56, {s(S_J)}'); I('s_lshl_b32 s56, s56, 2'); I(f's_add_u32 s56, s56, {s(S_W)}')
        I('s_lshl_b32 s56, s56, 10'); I(f's_add_u32 s56, s56, {WS_XF}')
        I(f'v_lshlrev_b32 v25, 3, {v(V_L16)}')
        I(f's_lshl_b32 s57, 1, {s(S_J)}'); I('s_xor_b32 s57, s57, 0xff')
        L = p.newlabel('Lx'); L2 = p.newlabel('Lx')
        I(f's_mov_b32 s58, {SPIN_MAX}')
        I('s_mov_b32 exec_hi, 0'); I('s_mov_b32 exec_lo, s57')
        p.label(L)
        p.vm(f'buffer_load_dword v26, v25, {s(SRD_WS,4)}, s56 offen sc1')
        p.wait_vm_all()
        I(f's_sub_u32 s58, s58, 1'); I(f's_cbranch_scc1 {L2}')
        I(f'v_cmp_ne_u32 vcc, {s(S_NONCE)}, v26'); I('s_nop 1'); I('s_cmp_eq_u64 vcc, 0'); I(f's_cbranch_scc0 {L}')
        p.label(L2)
        I('s_mov_b64 exec, -1')
        self.stamp('X_seen')
        PB = 64
        I(f's_lshl_b32 s60, {s(S_I)}, 3'); I(f's_add_u32 s60, s60, {s(S_J)}')
        I('s_lshl_b32 s61, s60, 16'); I(f's_add_u32 s61, s61, {WS_PX}'); I(f's_lshl_b32 s62, {s(S_W)}, 11'); I('s_add_u32 s61, s61, s62')
        I('s_lshl_b32 s62, s60, 13'); I(f's_add_u32 s62, s62, {WS_PS}'); I('s_add_u32 s62, s62, s77')
        tags = []
        for d in range(1, 8):
            I(f's_add_u32 s56, {s(S_J)}, {d}'); I('s_and_b32 s56, s56, 7')
            I('s_lshl_b32 s57, s56, 13'); I('s_add_u32 s57, s57, s61')
            b = PB + 12*(d-1)
            p.vm(f'buffer_load_dwordx4 v[{b}:{b+3}], {v(V_L16)}, {s(SRD_WS,4)}, s57 offen sc1')
            p.vm(f'buffer_load_dwordx4 v[{b+4}:{b+7}], {v(V_L16)}, {s(SRD_WS,4)}, s57 offen offset:1024 sc1')
            I('s_lshl_b32 s57, s56, 10'); I('s_add_u32 s57, s57, s62')
            tags.append(p.vm(f'buffer_load_dwordx4 v[{b+8}:{b+11}], {v(V_L16)}, {s(SRD_WS,4)}, s57 offen sc1'))
        I('s_mov_b32 s56, 0x3f80'); I('s_mov_b32 s57, 0x3f800000')
        def addpair(dst, src):
            I(f'v_dot2_f32_bf16 v{dst}, v{src}, s56, v{dst}'); I(f'v_dot2_f32_bf16 v{dst+1}, v{src}, s57, v{dst+1}')
        for tg in range(4):
            for h in range(2): addpair(acc+4*tg+2*h, X+2*tg+h); addpair(acc+4*tg+2*h, 16+h)
        for tg in range(2):
            for h in range(2): addpair(KEEP+4*tg+2*h, X+8+2*tg+h); addpair(KEEP+4*tg+2*h, 18+h)
        for d in range(1, 8):
            p.wait_vm(tags[d-1]); b = PB + 12*(d-1)
            for tg in range(4):
                for h in range(2): addpair(acc+4*tg+2*h, b+2*tg+h)
            for tg in range(2):
                for h in range(2): addpair(KEEP+4*tg+2*h, b+8+2*tg+h)
        for tg in range(4):
            I(f'v_cvt_pk_bf16_f32 v{X+2*tg}, v{acc+4*tg}, v{acc+4*tg+1}'); I(f'v_cvt_pk_bf16_f32 v{X+2*tg+1}, v{acc+4*tg+2}, v{acc+4*tg+3}')
        for tg in range(2):
            I(f'v_cvt_pk_bf16_f32 v{X+8+2*tg}, v{KEEP+4*tg}, v{KEEP+4*tg+1}'); I(f'v_cvt_pk_bf16_f32 v{X+9+2*tg}, v{KEEP+4*tg+2}, v{KEEP+4*tg+3}')
        for tg in range(4):
            I(f's_mov_b32 s60, {18432*tg}')
            p.vm(f'buffer_store_dwordx2 v[{X+2*tg}:{X+2*tg+1}], v22, {s(SRD_OUT,4)}, s60 offen')
        for tg in range(2):
            I(f's_add_u32 s60, s77, {18432*tg}')
            p.vm(f'buffer_store_dwordx2 v[{X+8+2*tg}:{X+9+2*tg}], v24, {s(SRD_OUT,4)}, s60 offen')
        self.stamp('out_issued')
        I(f's_or_b32 s56, s2, {s(S_W)}'); I('s_cmp_eq_u32 s56, 0'); I(f's_mov_b32 s57, {WS_NONCE}'); I(f's_cselect_b32 s56, s57, {OOB}')
        self.set_flag_s(56)

    def build(self):
        p = self.p
        self.prologue()
        self.qkv()
        if self.stop == 'qkv':
            p.wait_vm_all(); self.dump_lds(0, 24576); p.wait_vm_all(); self.end(); return
        self.gemm1()
        self.stamp('g1_done')
        if self.stop == 'g1':
            p.wait_vm_all(); self.dump_lds(L_HF, 73728); p.wait_vm_all(); self.end(); return
        self.attention()
        self.stamp('att_done')
        if self.stop == 'att':
            p.wait_vm_all(); self.dump_lds(L_HF, 86016); p.wait_vm_all(); self.end(); return
        self.gemm2()
        self.end()

    def finish(self):
        p = self.p
        nh = p.fix_hazards_fast(verbose=self.cfg.get('verbose', False))
        if self.cfg.get('align', True): nprom, nnop, size = p.align8()
        else: p.compute_sizes(); nprom = nnop = 0
        off = 0; base = None
        for I in p.ins:
            if I.kind in ('label', 'comment'): continue
            off += I.size
            if I.op == 's_getpc_b64' and base is None: base = off
        last = off - base - 4
        for I in p.ins:
            if I.note == 'CODEWARM': I.text = I.text.replace('0x7ffffff0', hex(last))
        sys.stderr.write(f'hazard nops {nh}, align promoted {nprom} nops {nnop}, code bytes {off}, max vm outstanding {p.max_vm_out}\n')
        hdr = open('parallel_sum__linear_attn_block__mixer_channel_mlp__prompt.s.ref').read().split('\n')
        out = []
        for line in hdr:
            if line.startswith('; @launch'): out.append(f'; @launch grid=(256,1,1) block=(256,1,1) lds={LDS_SIZE}')
            elif line.startswith(';'): out.append(line)
            else: break
        out += ['.amdgcn_target "amdgcn-amd-amdhsa--gfx950"', '.text', f'.globl {KNAME}', '.p2align 8', f'.type {KNAME},@function', f'{KNAME}:', p.text(),
                '.section .rodata,"a"', '.p2align 6', f'.amdhsa_kernel {KNAME}', '  .amdhsa_next_free_vgpr 512', '  .amdhsa_next_free_sgpr 102',
                '  .amdhsa_accum_offset 256', '  .amdhsa_group_segment_fixed_size 0', '  .amdhsa_kernarg_size 88', '  .amdhsa_user_sgpr_count 2',
                '  .amdhsa_user_sgpr_kernarg_segment_ptr 1', '  .amdhsa_system_sgpr_workgroup_id_x 1', '  .amdhsa_float_denorm_mode_32 3', '.end_amdhsa_kernel']
        return '\n'.join(out) + '\n'

if __name__ == '__main__':
    cfg = json.loads(sys.argv[2]) if len(sys.argv) > 2 else {}
    g = Gen(cfg)
    g.build()
    open(sys.argv[1], 'w').write(g.finish())
```
